```python
import torch

def _softmax(x, axis=-1):
    return torch.softmax(x, dim=axis)

def _gelu(x):
    return torch.nn.functional.gelu(x, approximate='tanh')

def _silu(x):
    return torch.nn.functional.silu(x)

def _sigmoid(x):
    return torch.sigmoid(x)

def _layernorm(x, axis=-1, eps=1e-05):
    m = x.mean(dim=axis, keepdim=True)
    v = x.var(dim=axis, keepdim=True, unbiased=False)
    return (x - m) / torch.sqrt(v + eps)

def _scatter_add(tgt, idx, src, axis=0):
    return tgt.clone().index_add_(axis, idx, src)

def _segment_sum(src, seg, n):
    out = torch.zeros((n,) + src.shape[1:], dtype=src.dtype)
    return out.index_add_(0, seg, src)

def _pad(x, pw):
    flat = tuple((v for pair in reversed(pw) for v in pair))
    return torch.nn.functional.pad(x, flat)
kernel_name = 'standalone__kv_cache_quant_pre_rope_vs_post_rope__decode'

def setup_inputs():

    _w = lambda a: (lambda t: t.to(torch.bfloat16) if t.is_floating_point() else t)(torch.as_tensor(a))
    B, Sq, Skv = (4, 1, 8192)
    H, Dh0 = (4, 128)
    G = 64 if 64 > 0 else Dh0
    G = max(2, G // 2 * 2)
    Dh = max(G, Dh0 // G * G)
    Skv = max(Skv, Sq)
    ng = Dh // G
    bits = 2 if 2 > 1 else 4
    bits = max(2, min(8, bits))
    qmax = (1 << bits) - 1
    half = Dh // 2
    inv = 1.0 / 10000.0 ** (torch.arange(half) / max(1, half))
    ang_k = torch.arange(Skv)[:, None] * inv[None, :]
    ang_q = torch.arange(Skv - Sq, Skv)[:, None] * inv[None, :]
    kc = torch.cat([torch.cos(ang_k), torch.cos(ang_k)], dim=-1)
    ks = torch.cat([torch.sin(ang_k), torch.sin(ang_k)], dim=-1)
    qc = torch.cat([torch.cos(ang_q), torch.cos(ang_q)], dim=-1)
    qs = torch.cat([torch.sin(ang_q), torch.sin(ang_q)], dim=-1)
    qk_i = torch.randint(0, qmax + 1, (B, H, Skv, Dh)).to(torch.int32)
    qv_i = torch.randint(0, qmax + 1, (B, H, Skv, Dh)).to(torch.int32)
    ksc = torch.abs((lambda *s: torch.randn(*s, dtype=torch.bfloat16) * 0.4)(B, H, Skv, ng)) * 0.1 + 0.01
    kzp = torch.full((B, H, Skv, ng), qmax / 2.0)
    vsc = torch.abs((lambda *s: torch.randn(*s, dtype=torch.bfloat16) * 0.4)(B, H, Skv, ng)) * 0.1 + 0.01
    vzp = torch.full((B, H, Skv, ng), qmax / 2.0)
    return {'q': _w((lambda *s: torch.randn(*s, dtype=torch.bfloat16) * 12.8)(B, H, Sq, Dh) * 0.5), 'qk': _w(qk_i), 'k_scales': _w(ksc), 'k_zeros': _w(kzp), 'qv': _w(qv_i), 'v_scales': _w(vsc), 'v_zeros': _w(vzp), 'q_cos': _w(qc), 'q_sin': _w(qs), 'k_cos': _w(kc), 'k_sin': _w(ks)}

def reference(q, qk, k_scales, k_zeros, qv, v_scales, v_zeros, q_cos, q_sin, k_cos, k_sin):
    B, H, Sq, Dh = q.shape
    ng = k_scales.shape[-1]
    G = Dh // ng
    half = Dh // 2
    ks = (lambda x, n, axis: torch.repeat_interleave(x, n, dim=axis))(k_scales, G, axis=-1)
    kz = (lambda x, n, axis: torch.repeat_interleave(x, n, dim=axis))(k_zeros, G, axis=-1)
    k = ((lambda x, dt: x.to(dt))(qk, q.dtype) - kz) * ks
    vs = (lambda x, n, axis: torch.repeat_interleave(x, n, dim=axis))(v_scales, G, axis=-1)
    vz = (lambda x, n, axis: torch.repeat_interleave(x, n, dim=axis))(v_zeros, G, axis=-1)
    v = ((lambda x, dt: x.to(dt))(qv, q.dtype) - vz) * vs
    k1 = k[..., :half].clone()
    k2 = k[..., half:].clone()
    krh = torch.concatenate([-k2, k1], axis=-1)
    kr = k * k_cos[None, None, :, :] + krh * k_sin[None, None, :, :]
    q1 = q[..., :half].clone()
    q2 = q[..., half:].clone()
    qrh = torch.concatenate([-q2, q1], axis=-1)
    qr = q * q_cos[None, None, :, :] + qrh * q_sin[None, None, :, :]
    logits = torch.einsum('bhqd,bhkd->bhqk', qr, kr) * float(Dh) ** (-0.5)
    attn = _softmax(logits, axis=-1)
    out = torch.einsum('bhqk,bhkd->bhqd', attn, v)
    return out
```

```python
class Asm:
    def __init__(self):
        self.lines = []
        self.vm = []
    def __call__(self, s):
        for l in s.split('\n'):
            self.lines.append('    ' + l.strip())
    def label(self, name):
        self.lines.append(name + ':')
    def comment(self, s):
        self.lines.append('    ; ' + s)
    def vmem(self, text, tag):
        self(text)
        self.vm.append(tag)
    def wait_vm(self, tag):
        idx = max(i for i, t in enumerate(self.vm) if t == tag)
        n = len(self.vm) - 1 - idx
        assert n <= 63, (tag, n)
        self('s_waitcnt vmcnt(%d)' % n)
        self.vm = self.vm[idx + 1:]
    def wait_vm_if(self, tag):
        if tag in self.vm:
            self.wait_vm(tag)
    def wait_vm_all(self):
        self('s_waitcnt vmcnt(0)')
        self.vm = []
    def text(self):
        return '\n'.join(self.lines) + '\n'

def v(i, n=1):
    return 'v%d' % i if n == 1 else 'v[%d:%d]' % (i, i + n - 1)
def s(i, n=1):
    return 's%d' % i if n == 1 else 's[%d:%d]' % (i, i + n - 1)

HEADER = '''; Kernarg layout for this problem (112 bytes, ptrs only, base s[0:1]):
'''
KNAME = 'standalone__kv_cache_quant_pre_rope_vs_post_rope__decode_kernel'

def wrap(body, launch, nvgpr, nsgpr=102, accum=None, extra_desc='', notes=''):
    if accum is None:
        accum = (nvgpr + 3) // 4 * 4
    out = HEADER + launch + '\n' + notes
    out += '.amdgcn_target "amdgcn-amd-amdhsa--gfx950"\n.text\n'
    out += '.globl %s\n.p2align 8\n.type %s,@function\n%s:\n' % (KNAME, KNAME, KNAME)
    out += body
    out += '.section .rodata,"a"\n.p2align 6\n.amdhsa_kernel %s\n' % KNAME
    out += '  .amdhsa_next_free_vgpr %d\n  .amdhsa_next_free_sgpr %d\n  .amdhsa_accum_offset %d\n' % (nvgpr, nsgpr, accum)
    out += '  .amdhsa_group_segment_fixed_size 0\n  .amdhsa_kernarg_size 112\n  .amdhsa_user_sgpr_count 2\n'
    out += '  .amdhsa_user_sgpr_kernarg_segment_ptr 1\n  .amdhsa_system_sgpr_workgroup_id_x 1\n'
    out += extra_desc
    out += '.end_amdhsa_kernel\n'
    return out
```

```python
import sys, math
from asmlib import *

def gen(kv_flags='nt', tab_flags='', nslots=8, stamps=False):
    a = Asm()
    S_WAVE = 3
    S_KOFF = 4
    S_TOFF = 8
    S_SCOFF = 10
    S_QOFF = 11
    S_SEL_LO, S_SEL_HI = 12, 13
    S_HEAD = 14
    S_TMP = 15
    KA = 16
    S_M1, S_M0 = 16, 18
    S_C = 20
    S_HI = 21
    S_RECOFF = 22
    SRD = dict(qk=44, qv=48, kcos=52, ksin=56, ks=60, kz=64, vs=68, vz=72, q=76, qcos=80, qsin=84, out=88, ws=92, dbg=96)
    karg = dict(q=16, qk=18, ks=20, kz=22, qv=24, vs=26, vz=28, qcos=30, qsin=32, kcos=34, ksin=36, out=38, dbg=40, ws=42)
    size = dict(qk=1 << 26, qv=1 << 26, kcos=1 << 21, ksin=1 << 21, ks=1 << 19, kz=1 << 19, vs=1 << 19, vz=1 << 19,
                q=4096, qcos=256, qsin=256, out=4096, ws=1 << 20, dbg=256)
    def srd(n): return s(SRD[n], 4)
    V_O16, V_O8C, V_O8S, V_OSC = 1, 2, 3, 4
    V_KZ, V_KS, V_VS, V_VZ = 5, 6, 7, 8
    V_QP = 9
    V_O = 13
    V_S = 18
    V_T = 34
    V_SLOT = 44
    NV = V_SLOT + nslots * 8
    def slotK(i): return V_SLOT + (i % nslots) * 8
    def slotC(i): return slotK(i) + 4
    def slotS(i): return slotK(i) + 6
    def slotV(i): return V_SLOT + (i // 2) * 8 + (i % 2) * 4

    a('s_cmp_ge_u32 s2, 256')
    a('s_cbranch_scc1 L_end')
    a('s_load_dwordx16 s[16:31], s[0:1], 0')
    a('s_load_dwordx8 s[32:39], s[0:1], 64')
    a('s_load_dwordx4 s[40:43], s[0:1], 96')
    a('v_lshrrev_b32 v1, 6, v0')
    a('v_and_b32 v0, 63, v0')
    a('v_readfirstlane_b32 s%d, v1' % S_WAVE)
    a('v_lshlrev_b32 v%d, 4, v0' % V_O16)
    a('v_lshlrev_b32 v%d, 3, v0' % V_O8C)
    a('v_xor_b32 v%d, 0x80, v%d' % (V_O8S, V_O8C))
    a('v_and_b32 v%d, 15, v0' % V_T)
    a('v_lshlrev_b32 v%d, 3, v%d' % (V_T, V_T))
    a('v_lshrrev_b32 v%d, 4, v0' % (V_T + 1))
    a('v_lshl_add_u32 v%d, v%d, 1, v%d' % (V_OSC, V_T + 1, V_T))
    VQA, VQB = V_T + 2, V_T + 3
    a('v_and_b32 v%d, 0xff, v%d' % (VQA, V_O8C))
    a('v_xor_b32 v%d, 0x80, v%d' % (VQB, VQA))
    a('s_lshr_b32 s%d, s2, 4' % S_HEAD)
    a('s_and_b32 s%d, s2, 15' % S_TMP)
    a('s_lshl_b32 s%d, s%d, 9' % (S_TMP, S_TMP))
    a('s_lshl_b32 s%d, s%d, 5' % (S_QOFF, S_WAVE))
    a('s_add_u32 s%d, s%d, s%d' % (S_TMP, S_TMP, S_QOFF))
    a('s_lshl_b32 s%d, s%d, 22' % (S_KOFF, S_HEAD))
    a('s_lshl_b32 s%d, s%d, 9' % (S_KOFF + 1, S_TMP))
    a('s_add_u32 s%d, s%d, s%d' % (S_KOFF, S_KOFF, S_KOFF + 1))
    for j in range(1, 4):
        a('s_add_u32 s%d, s%d, %d' % (S_KOFF + j, S_KOFF, 4096 * j))
    a('s_lshl_b32 s%d, s%d, 8' % (S_TOFF, S_TMP))
    a('s_add_u32 s%d, s%d, 4096' % (S_TOFF + 1, S_TOFF))
    a('s_lshl_b32 s%d, s%d, 15' % (S_SCOFF, S_HEAD))
    a('s_lshl_b32 s%d, s%d, 2' % (S_QOFF, S_TMP))
    a('s_add_u32 s%d, s%d, s%d' % (S_SCOFF, S_SCOFF, S_QOFF))
    a('s_lshl_b32 s%d, s%d, 8' % (S_QOFF, S_HEAD))
    a('s_mov_b32 s%d, 0x05040100' % S_SEL_LO)
    a('s_mov_b32 s%d, 0x07060302' % S_SEL_HI)
    for n in SRD:
        a('s_mov_b32 s%d, 0x%x' % (SRD[n] + 2, size[n]))
        a('s_mov_b32 s%d, 0x00020000' % (SRD[n] + 3))
    a('s_waitcnt lgkmcnt(0)')
    order = ['q', 'qcos', 'qsin', 'kz', 'qk', 'kcos', 'ksin', 'ks', 'vs', 'vz', 'qv', 'out', 'ws', 'dbg']
    def mksrd(n):
        a('s_mov_b64 s[%d:%d], s[%d:%d]' % (SRD[n], SRD[n] + 1, karg[n], karg[n] + 1))
    for n in order:
        mksrd(n)
    QA, QB, CA, CB, SA, SB = V_S, V_S + 2, V_S + 4, V_S + 6, V_S + 8, V_S + 10
    a.vmem('buffer_load_dwordx2 %s, v%d, %s, s%d offen' % (v(QA, 2), VQA, srd('q'), S_QOFF), 'q')
    a.vmem('buffer_load_dwordx2 %s, v%d, %s, s%d offen' % (v(QB, 2), VQB, srd('q'), S_QOFF), 'q')
    a.vmem('buffer_load_dwordx2 %s, v%d, %s, 0 offen' % (v(CA, 2), VQA, srd('qcos')), 'q')
    a.vmem('buffer_load_dwordx2 %s, v%d, %s, 0 offen' % (v(CB, 2), VQB, srd('qcos')), 'q')
    a.vmem('buffer_load_dwordx2 %s, v%d, %s, 0 offen' % (v(SA, 2), VQA, srd('qsin')), 'q')
    a.vmem('buffer_load_dwordx2 %s, v%d, %s, 0 offen' % (v(SB, 2), VQB, srd('qsin')), 'q')
    a.vmem('buffer_load_ushort v%d, v%d, %s, s%d offen' % (V_KZ, V_OSC, srd('kz'), S_SCOFF), 'kz')
    def issue_k(i):
        a.vmem('buffer_load_dwordx4 %s, v%d, %s, s%d offen offset:%d %s' % (
            v(slotK(i), 4), V_O16, srd('qk'), S_KOFF + i // 4, (i % 4) * 1024, kv_flags), 'k%d' % i)
        a.vmem('buffer_load_dwordx2 %s, v%d, %s, s%d offen offset:%d %s' % (
            v(slotC(i), 2), V_O8C, srd('kcos'), S_TOFF + i // 8, (i % 8) * 512, tab_flags), 'c%d' % i)
        a.vmem('buffer_load_dwordx2 %s, v%d, %s, s%d offen offset:%d %s' % (
            v(slotS(i), 2), V_O8S, srd('ksin'), S_TOFF + i // 8, (i % 8) * 512, tab_flags), 's%d' % i)
    def issue_v(i):
        a.vmem('buffer_load_dwordx4 %s, v%d, %s, s%d offen offset:%d %s' % (
            v(slotV(i), 4), V_O16, srd('qv'), S_KOFF + i // 4, (i % 4) * 1024, kv_flags), 'v%d' % i)
    for i in range(nslots):
        issue_k(i)
    a.vmem('buffer_load_ushort v%d, v%d, %s, s%d offen' % (V_KS, V_OSC, srd('ks'), S_SCOFF), 'ks')
    a.vmem('buffer_load_ushort v%d, v%d, %s, s%d offen' % (V_VS, V_OSC, srd('vs'), S_SCOFF), 'vs')
    a.vmem('buffer_load_ushort v%d, v%d, %s, s%d offen' % (V_VZ, V_OSC, srd('vz'), S_SCOFF), 'vz')
    a('s_mov_b32 s%d, 0xcccccccc' % S_M1); a('s_mov_b32 s%d, 0xcccccccc' % (S_M1 + 1))
    a('s_mov_b32 s%d, 0xaaaaaaaa' % S_M0); a('s_mov_b32 s%d, 0xaaaaaaaa' % (S_M0 + 1))
    C = (128.0 ** -0.5) * math.log2(math.e)
    import struct
    a('s_mov_b32 s%d, 0x%08x' % (S_C, struct.unpack('<I', struct.pack('<f', C))[0]))
    a('s_mov_b32 s%d, 0xffff0000' % S_HI)
    SM, SN = V_T + 4, V_T + 5
    a('v_and_b32 v%d, 16, v0' % SM)
    a('v_lshlrev_b32 v%d, 27, v%d' % (SN, SM))
    a('v_xor_b32 v%d, 0x80000000, v%d' % (SM, SN))
    a.wait_vm('q')
    T0, T1, T2, T3 = V_T, V_T + 1, V_T + 6, V_T + 7
    T4, T5 = V_T + 8, V_T + 9
    def unpack(dst, base, j):
        r = base + j // 2
        if j % 2 == 0:
            a('v_lshlrev_b32 v%d, 16, v%d' % (dst, r))
        else:
            a('v_and_b32 v%d, s%d, v%d' % (dst, S_HI, r))
    for j in range(4):
        unpack(T0, QA, j); unpack(T1, CA, j); unpack(T2, QB, j); unpack(T3, SA, j)
        a('v_mul_f32 v%d, v%d, v%d' % (T1, T0, T1))
        a('v_xor_b32 v%d, v%d, v%d' % (T4, SM, T2))
        a('v_mul_f32 v%d, v%d, v%d' % (T3, T4, T3))
        a('v_cvt_pk_bf16_f32 v%d, v%d, v%d' % (T1, T1, T3))
        a('v_lshlrev_b32 v%d, 16, v%d' % (T3, T1))
        a('v_and_b32 v%d, s%d, v%d' % (T1, S_HI, T1))
        a('v_add_f32 v%d, v%d, v%d' % (T5, T1, T3))
        unpack(T1, CB, j); unpack(T3, SB, j)
        a('v_mul_f32 v%d, v%d, v%d' % (T1, T2, T1))
        a('v_xor_b32 v%d, v%d, v%d' % (T4, SN, T0))
        a('v_mul_f32 v%d, v%d, v%d' % (T3, T4, T3))
        a('v_cvt_pk_bf16_f32 v%d, v%d, v%d' % (T1, T1, T3))
        a('v_lshlrev_b32 v%d, 16, v%d' % (T3, T1))
        a('v_and_b32 v%d, s%d, v%d' % (T1, S_HI, T1))
        a('v_add_f32 v%d, v%d, v%d' % (T1, T1, T3))
        a('v_xor_b32 v%d, v%d, v%d' % (T1, SN, T1))
        a('v_cvt_pk_bf16_f32 v%d, v%d, v%d' % (V_QP + j, T5, T1))
    a.wait_vm('kz')
    a('v_lshlrev_b32 v%d, 16, v%d' % (V_KZ, V_KZ))
    def k_step(i):
        K, Cc, Ss = slotK(i), slotC(i), slotS(i)
        a.wait_vm('s%d' % i)
        P = V_T
        a('v_perm_b32 v%d, v%d, v%d, s%d' % (P + 0, Ss, Cc, S_SEL_LO))
        a('v_perm_b32 v%d, v%d, v%d, s%d' % (P + 1, Ss, Cc, S_SEL_HI))
        a('v_perm_b32 v%d, v%d, v%d, s%d' % (P + 2, Ss + 1, Cc + 1, S_SEL_LO))
        a('v_perm_b32 v%d, v%d, v%d, s%d' % (P + 3, Ss + 1, Cc + 1, S_SEL_HI))
        for j in range(4):
            a('v_dot2_f32_bf16 v%d, v%d, v%d, 0' % (P + 4 + j, P + j, V_QP + j))
        for j in range(4):
            a('v_cvt_f32_i32 v%d, v%d' % (K + j, K + j))
        for j in range(4):
            a('v_subrev_f32_dpp v%d, v%d, v%d row_newbcast:%d row_mask:0xf bank_mask:0xf' % (K + j, V_KZ, K + j, i))
        a('v_mul_f32 v%d, v%d, v%d' % (V_S + i, K + 0, P + 4))
        for j in range(1, 4):
            a('v_fmac_f32 v%d, v%d, v%d' % (V_S + i, K + j, P + 4 + j))
    for i in range(16):
        k_step(i)
        if i + nslots < 16:
            issue_k(i + nslots)
        else:
            sl = i % nslots
            if sl < 8:
                issue_v(2 * sl); issue_v(2 * sl + 1)
    a('s_nop 1')
    for i in range(8):
        a('v_add_f32_dpp v%d, v%d, v%d row_mirror row_mask:0xf bank_mask:0x3' % (V_S + i, V_S + i, V_S + i))
    for i in range(8):
        a('v_add_f32_dpp v%d, v%d, v%d row_mirror row_mask:0xf bank_mask:0xc' % (V_S + i, V_S + 8 + i, V_S + 8 + i))
    for i in range(4):
        a('v_add_f32_dpp v%d, v%d, v%d row_half_mirror row_mask:0xf bank_mask:0x5' % (V_S + i, V_S + i, V_S + i))
    for i in range(4):
        a('v_add_f32_dpp v%d, v%d, v%d row_half_mirror row_mask:0xf bank_mask:0xa' % (V_S + i, V_S + 4 + i, V_S + 4 + i))
    for i in range(4):
        a('v_add_f32_dpp v%d, v%d, v%d quad_perm:[2,3,0,1] row_mask:0xf bank_mask:0xf' % (V_S + 4 + i, V_S + i, V_S + i))
    a('v_cndmask_b32 v%d, v%d, v%d, s[%d:%d]' % (V_S, V_S + 4, V_S + 6, S_M1, S_M1 + 1))
    a('v_cndmask_b32 v%d, v%d, v%d, s[%d:%d]' % (V_S + 1, V_S + 5, V_S + 7, S_M1, S_M1 + 1))
    a('s_nop 0')
    a('v_add_f32_dpp v%d, v%d, v%d quad_perm:[1,0,3,2] row_mask:0xf bank_mask:0xf' % (V_S + 2, V_S, V_S))
    a('v_add_f32_dpp v%d, v%d, v%d quad_perm:[1,0,3,2] row_mask:0xf bank_mask:0xf' % (V_S + 3, V_S + 1, V_S + 1))
    a('v_cndmask_b32 v%d, v%d, v%d, s[%d:%d]' % (V_S, V_S + 2, V_S + 3, S_M0, S_M0 + 1))
    a.wait_vm_if('vz')
    a('v_lshlrev_b32 v%d, 16, v%d' % (V_KS, V_KS))
    a('v_lshlrev_b32 v%d, 16, v%d' % (V_VS, V_VS))
    a('v_lshlrev_b32 v%d, 16, v%d' % (V_VZ, V_VZ))
    LG, X, Y = V_S, V_S + 1, V_S + 2
    a('v_mul_f32 v%d, v%d, v%d' % (LG, LG, V_KS))
    a('v_mov_b32 v%d, v%d' % (X, LG))
    a('s_nop 1')
    a('v_permlane16_swap_b32 v%d, v%d' % (LG, X))
    a('v_add_f32 v%d, v%d, v%d' % (LG, LG, X))
    a('v_mul_f32 v%d, s%d, v%d' % (LG, S_C, LG))
    a('s_nop 1')
    a('v_max_f32_dpp v%d, v%d, v%d row_ror:8 row_mask:0xf bank_mask:0xf' % (X, LG, LG))
    for n in (4, 2, 1):
        a('s_nop 1')
        a('v_max_f32_dpp v%d, v%d, v%d row_ror:%d row_mask:0xf bank_mask:0xf' % (X, X, X, n))
    a('v_mov_b32 v%d, v%d' % (Y, X))
    a('s_nop 1')
    a('v_permlane32_swap_b32 v%d, v%d' % (X, Y))
    a('v_max_f32 v%d, v%d, v%d' % (X, X, Y))
    a('s_lshl_b32 s%d, s%d, 2' % (S_TMP, S_WAVE))
    a('v_mov_b32 v%d, s%d' % (Y, S_TMP))
    a('ds_write_b32 v%d, v%d' % (Y, X))
    a('v_and_b32 v%d, 15, v0' % Y)
    a('v_lshlrev_b32 v%d, 2, v%d' % (Y, Y))
    a('s_waitcnt lgkmcnt(0)')
    a('s_barrier')
    a('ds_read_b32 v%d, v%d' % (X, Y))
    a('s_waitcnt lgkmcnt(0)')
    for n in (8, 4, 2, 1):
        a('s_nop 1')
        a('v_max_f32_dpp v%d, v%d, v%d row_ror:%d row_mask:0xf bank_mask:0xf' % (X, X, X, n))
    VM = V_S + 3
    a('v_mov_b32 v%d, v%d' % (VM, X))
    PP, AA, AZ = V_S + 4, V_S + 5, V_S + 6
    a('v_sub_f32 v%d, v%d, v%d' % (PP, LG, VM))
    a('v_exp_f32 v%d, v%d' % (PP, PP))
    a('s_nop 0')
    a('v_mul_f32 v%d, v%d, v%d' % (AA, PP, V_VS))
    a('v_mul_f32 v%d, v%d, v%d' % (AZ, AA, V_VZ))
    for n in (8, 4, 2, 1):
        a('s_nop 0')
        a('v_add_f32_dpp v%d, v%d, v%d row_ror:%d row_mask:0xf bank_mask:0xf' % (PP, PP, PP, n))
        a('s_nop 0') if n == 8 else None
        a('v_add_f32_dpp v%d, v%d, v%d row_ror:%d row_mask:0xf bank_mask:0xf' % (AZ, AZ, AZ, n))
    a('s_nop 0')
    for j in range(4):
        a('v_sub_f32 v%d, 0, v%d' % (V_O + j, AZ))
    VL = V_S + 7
    a('v_mov_b32 v%d, v%d' % (VL, PP))
    a('s_nop 1')
    a('v_permlane32_swap_b32 v%d, v%d' % (PP, VL))
    a('v_add_f32 v%d, v%d, v%d' % (VL, VL, PP))
    for i in range(16):
        R = slotV(i)
        a.wait_vm('v%d' % i)
        for j in range(4):
            a('v_cvt_f32_i32 v%d, v%d' % (R + j, R + j))
        for j in range(4):
            a('v_fmac_f32_dpp v%d, v%d, v%d row_newbcast:%d row_mask:0xf bank_mask:0xf' % (V_O + j, AA, R + j, i))
    a('s_nop 1')
    a('v_permlane32_swap_b32 v%d, v%d' % (V_O, V_O + 2))
    a('v_permlane32_swap_b32 v%d, v%d' % (V_O + 1, V_O + 3))
    E = V_T + 2
    assert E % 4 == 0
    a('v_add_f32 v%d, v%d, v%d' % (E, V_O, V_O + 2))
    a('v_add_f32 v%d, v%d, v%d' % (E + 1, V_O + 1, V_O + 3))
    a('v_mov_b32 v%d, v%d' % (E + 2, VL))
    a('v_mov_b32 v%d, v%d' % (E + 3, VM))
    a('s_lshl_b32 s%d, s%d, 10' % (S_TMP, S_WAVE))
    a('v_add_u32 v%d, s%d, v%d' % (V_T, S_TMP, V_O16))
    a('ds_write_b128 v%d, %s offset:1024' % (V_T, v(E, 4)))
    a('s_waitcnt lgkmcnt(0)')
    a('s_barrier')
    a('s_cmp_lg_u32 s%d, 0' % S_WAVE)
    a('s_cbranch_scc1 L_end')
    for w in range(16):
        a('ds_read_b128 %s, v%d offset:%d' % (v(V_SLOT + 4 * w, 4), V_O16, 1024 + 1024 * w))
    for w in range(1, 16):
        a('s_waitcnt lgkmcnt(%d)' % (15 - w))
        if w == 1:
            for j in range(3):
                a('v_add_f32 v%d, v%d, v%d' % (E + j, V_SLOT + j, V_SLOT + 4 + j))
        else:
            for j in range(3):
                a('v_add_f32 v%d, v%d, v%d' % (E + j, E + j, V_SLOT + 4 * w + j))
    a('s_lshl_b32 s%d, s2, 10' % S_RECOFF)
    a.vm = []
    a.vmem('buffer_store_dwordx4 %s, v%d, %s, s%d offen sc1' % (v(E, 4), V_O16, srd('ws'), S_RECOFF), 'st')
    a.wait_vm_all()
    a('s_mov_b64 exec, 1')
    a('v_mov_b32 v%d, 1' % V_T)
    a('s_lshl_b32 s%d, s%d, 4' % (S_TMP, S_HEAD))
    a('buffer_atomic_add v%d, off, %s, s%d sc0 sc1' % (V_T, srd('dbg'), S_TMP))
    a('s_waitcnt vmcnt(0)')
    a('v_readfirstlane_b32 s%d, v%d' % (S_TMP, V_T))
    a('s_mov_b64 exec, -1')
    a('s_cmp_lg_u32 s%d, 15' % S_TMP)
    a('s_cbranch_scc1 L_end')
    a('s_lshl_b32 s%d, s%d, 14' % (S_RECOFF, S_HEAD))
    for i in range(16):
        a('s_add_u32 s%d, s%d, %d' % (S_TMP, S_RECOFF, (i // 4) * 4096)) if i % 4 == 0 else None
        a.vmem('buffer_load_dwordx4 %s, v%d, %s, s%d offen offset:%d sc1' % (
            v(V_SLOT + 4 * i, 4), V_O16, srd('ws'), S_TMP, (i % 4) * 1024), 'r%d' % i)
    a.wait_vm_all()
    R = lambda i, j: V_SLOT + 4 * i + j
    MG = V_T
    a('v_max3_f32 v%d, v%d, v%d, v%d' % (MG, R(0, 3), R(1, 3), R(2, 3)))
    for i in range(3, 15, 2):
        a('v_max3_f32 v%d, v%d, v%d, v%d' % (MG, MG, R(i, 3), R(i + 1, 3)))
    a('v_max_f32 v%d, v%d, v%d' % (MG, MG, R(15, 3)))
    for i in range(16):
        a('v_sub_f32 v%d, v%d, v%d' % (R(i, 3), R(i, 3), MG))
    for i in range(16):
        a('v_exp_f32 v%d, v%d' % (R(i, 3), R(i, 3)))
    a('s_nop 0')
    for j in range(3):
        a('v_mul_f32 v%d, v%d, v%d' % (E + j, R(0, j), R(0, 3)))
    for i in range(1, 16):
        for j in range(3):
            a('v_fmac_f32 v%d, v%d, v%d' % (E + j, R(i, j), R(i, 3)))
    a('v_rcp_f32 v%d, v%d' % (E + 2, E + 2))
    a('s_nop 0')
    a('v_mul_f32 v%d, v%d, v%d' % (E, E, E + 2))
    a('v_mul_f32 v%d, v%d, v%d' % (E + 1, E + 1, E + 2))
    a('v_cvt_pk_bf16_f32 v%d, v%d, v%d' % (E, E, E + 1))
    a('v_and_b32 v%d, 31, v0' % V_T)
    a('v_lshlrev_b32 v%d, 3, v%d' % (V_T, V_T))
    a('v_lshrrev_b32 v%d, 5, v0' % (V_T + 1))
    a('v_lshl_add_u32 v%d, v%d, 2, v%d' % (V_T, V_T + 1, V_T))
    a('buffer_store_dword v%d, v%d, %s, s%d offen' % (E, V_T, srd('out'), S_QOFF))
    a.label('L_end')
    a('s_endpgm')
    launch = '; @launch grid=(256,1,1) block=(1024,1,1) lds=17408'
    return wrap(a.text(), launch, NV)

if __name__ == '__main__':
    kw = {}
    for arg in sys.argv[2:]:
        k, val = arg.split('=')
        kw[k] = int(val) if val.lstrip('-').isdigit() else val
    open(sys.argv[1], 'w').write(gen(**kw))
```

```python
import sys, math
from asmlib import *

def gen(kv_flags='nt', tab_flags='', nslots=8, stamps=False, enc=0):
    a = Asm()
    S_WAVE = 3
    S_KOFF = 4
    S_TOFF = 8
    S_SCOFF = 10
    S_QOFF = 11
    S_SEL_LO, S_SEL_HI = 12, 13
    S_HEAD = 14
    S_TMP = 15
    KA = 16
    S_M1, S_M0 = 16, 18
    S_C = 20
    S_HI = 21
    S_RECOFF = 22
    SRD = dict(qk=44, qv=48, kcos=52, ksin=56, ks=60, kz=64, vs=68, vz=72, q=76, qcos=80, qsin=84, out=88, ws=92, dbg=96)
    karg = dict(q=16, qk=18, ks=20, kz=22, qv=24, vs=26, vz=28, qcos=30, qsin=32, kcos=34, ksin=36, out=38, dbg=40, ws=42)
    size = dict(qk=1 << 26, qv=1 << 26, kcos=1 << 21, ksin=1 << 21, ks=1 << 19, kz=1 << 19, vs=1 << 19, vz=1 << 19,
                q=4096, qcos=256, qsin=256, out=4096, ws=1 << 21, dbg=256)
    def srd(n): return s(SRD[n], 4)
    V_O16, V_O8C, V_O8S, V_OSC = 1, 2, 3, 4
    V_KZ, V_KS, V_VS, V_VZ = 5, 6, 7, 8
    V_QP = 9
    V_O = 13
    V_S = 18
    V_T = 34
    V_SLOT = 44
    NV = V_SLOT + nslots * 8
    def slotK(i): return V_SLOT + (i % nslots) * 8
    def slotC(i): return slotK(i) + 4
    def slotS(i): return slotK(i) + 6
    def slotV(i): return V_SLOT + (i // 2) * 8 + (i % 2) * 4

    a('s_cmp_ge_u32 s2, 256')
    a('s_cbranch_scc1 L_end')
    NST = 7
    def stamp(k):
        if stamps:
            r = 100 if k == 0 else 24 + 2 * (k - 1)
            a('s_memrealtime s[%d:%d]' % (r, r + 1))
    def flush_stamps(k_last):
        if not stamps: return
        a('s_waitcnt lgkmcnt(0)')
        a('s_mul_i32 s23, s2, %d' % (NST * 4))
        a('s_add_u32 s23, s23, 0x100000')
        a('s_mov_b64 exec, 1')
        for k in range(NST):
            kk = min(k, k_last)
            r = 100 if kk == 0 else 24 + 2 * (kk - 1)
            a('v_mov_b32 v%d, s%d' % (V_T + 9, r))
            a('buffer_store_dword v%d, off, %s, s23 offset:%d' % (V_T + 9, srd('ws'), 4 * k))
            a('s_nop 1')
        a('s_mov_b64 exec, -1')
    stamp(0)
    if enc: a('s_memrealtime s[100:101]')
    a('s_load_dwordx16 s[16:31], s[0:1], 0')
    a('s_load_dwordx8 s[32:39], s[0:1], 64')
    a('s_load_dwordx4 s[40:43], s[0:1], 96')
    a('v_lshrrev_b32 v1, 6, v0')
    a('v_and_b32 v0, 63, v0')
    a('v_readfirstlane_b32 s%d, v1' % S_WAVE)
    a('v_lshlrev_b32 v%d, 4, v0' % V_O16)
    a('v_lshlrev_b32 v%d, 3, v0' % V_O8C)
    a('v_xor_b32 v%d, 0x80, v%d' % (V_O8S, V_O8C))
    a('v_and_b32 v%d, 15, v0' % V_T)
    a('v_lshlrev_b32 v%d, 3, v%d' % (V_T, V_T))
    a('v_lshrrev_b32 v%d, 4, v0' % (V_T + 1))
    a('v_lshl_add_u32 v%d, v%d, 1, v%d' % (V_OSC, V_T + 1, V_T))
    VQA, VQB = V_T + 2, V_T + 3
    a('v_and_b32 v%d, 0xff, v%d' % (VQA, V_O8C))
    a('v_xor_b32 v%d, 0x80, v%d' % (VQB, VQA))
    a('s_lshr_b32 s%d, s2, 4' % S_HEAD)
    a('s_and_b32 s%d, s2, 15' % S_TMP)
    a('s_lshl_b32 s%d, s%d, 9' % (S_TMP, S_TMP))
    a('s_lshl_b32 s%d, s%d, 5' % (S_QOFF, S_WAVE))
    a('s_add_u32 s%d, s%d, s%d' % (S_TMP, S_TMP, S_QOFF))
    a('s_lshl_b32 s%d, s%d, 22' % (S_KOFF, S_HEAD))
    a('s_lshl_b32 s%d, s%d, 9' % (S_KOFF + 1, S_TMP))
    a('s_add_u32 s%d, s%d, s%d' % (S_KOFF, S_KOFF, S_KOFF + 1))
    for j in range(1, 4):
        a('s_add_u32 s%d, s%d, %d' % (S_KOFF + j, S_KOFF, 4096 * j))
    a('s_lshl_b32 s%d, s%d, 8' % (S_TOFF, S_TMP))
    a('s_add_u32 s%d, s%d, 4096' % (S_TOFF + 1, S_TOFF))
    a('s_lshl_b32 s%d, s%d, 15' % (S_SCOFF, S_HEAD))
    a('s_lshl_b32 s%d, s%d, 2' % (S_QOFF, S_TMP))
    a('s_add_u32 s%d, s%d, s%d' % (S_SCOFF, S_SCOFF, S_QOFF))
    a('s_lshl_b32 s%d, s%d, 8' % (S_QOFF, S_HEAD))
    a('s_mov_b32 s%d, 0x05040100' % S_SEL_LO)
    a('s_mov_b32 s%d, 0x07060302' % S_SEL_HI)
    for n in SRD:
        a('s_mov_b32 s%d, 0x%x' % (SRD[n] + 2, size[n]))
        a('s_mov_b32 s%d, 0x00020000' % (SRD[n] + 3))
    a('s_waitcnt lgkmcnt(0)')
    order = ['q', 'qcos', 'qsin', 'kz', 'qk', 'kcos', 'ksin', 'ks', 'vs', 'vz', 'qv', 'out', 'ws', 'dbg']
    def mksrd(n):
        a('s_mov_b64 s[%d:%d], s[%d:%d]' % (SRD[n], SRD[n] + 1, karg[n], karg[n] + 1))
    for n in order:
        mksrd(n)
    QA, QB, CA, CB, SA, SB = V_S, V_S + 2, V_S + 4, V_S + 6, V_S + 8, V_S + 10
    a.vmem('buffer_load_dwordx2 %s, v%d, %s, s%d offen' % (v(QA, 2), VQA, srd('q'), S_QOFF), 'q')
    a.vmem('buffer_load_dwordx2 %s, v%d, %s, s%d offen' % (v(QB, 2), VQB, srd('q'), S_QOFF), 'q')
    a.vmem('buffer_load_dwordx2 %s, v%d, %s, 0 offen' % (v(CA, 2), VQA, srd('qcos')), 'q')
    a.vmem('buffer_load_dwordx2 %s, v%d, %s, 0 offen' % (v(CB, 2), VQB, srd('qcos')), 'q')
    a.vmem('buffer_load_dwordx2 %s, v%d, %s, 0 offen' % (v(SA, 2), VQA, srd('qsin')), 'q')
    a.vmem('buffer_load_dwordx2 %s, v%d, %s, 0 offen' % (v(SB, 2), VQB, srd('qsin')), 'q')
    a.vmem('buffer_load_ushort v%d, v%d, %s, s%d offen' % (V_KZ, V_OSC, srd('kz'), S_SCOFF), 'kz')
    def issue_k(i):
        a.vmem('buffer_load_dwordx4 %s, v%d, %s, s%d offen offset:%d %s' % (
            v(slotK(i), 4), V_O16, srd('qk'), S_KOFF + i // 4, (i % 4) * 1024, kv_flags), 'k%d' % i)
        a.vmem('buffer_load_dwordx2 %s, v%d, %s, s%d offen offset:%d %s' % (
            v(slotC(i), 2), V_O8C, srd('kcos'), S_TOFF + i // 8, (i % 8) * 512, tab_flags), 'c%d' % i)
        a.vmem('buffer_load_dwordx2 %s, v%d, %s, s%d offen offset:%d %s' % (
            v(slotS(i), 2), V_O8S, srd('ksin'), S_TOFF + i // 8, (i % 8) * 512, tab_flags), 's%d' % i)
    def issue_v(i):
        a.vmem('buffer_load_dwordx4 %s, v%d, %s, s%d offen offset:%d %s' % (
            v(slotV(i), 4), V_O16, srd('qv'), S_KOFF + i // 4, (i % 4) * 1024, kv_flags), 'v%d' % i)
    for i in range(nslots):
        issue_k(i)
    a.vmem('buffer_load_ushort v%d, v%d, %s, s%d offen' % (V_KS, V_OSC, srd('ks'), S_SCOFF), 'ks')
    a.vmem('buffer_load_ushort v%d, v%d, %s, s%d offen' % (V_VS, V_OSC, srd('vs'), S_SCOFF), 'vs')
    a.vmem('buffer_load_ushort v%d, v%d, %s, s%d offen' % (V_VZ, V_OSC, srd('vz'), S_SCOFF), 'vz')
    a('s_mov_b32 s%d, 0xcccccccc' % S_M1); a('s_mov_b32 s%d, 0xcccccccc' % (S_M1 + 1))
    a('s_mov_b32 s%d, 0xaaaaaaaa' % S_M0); a('s_mov_b32 s%d, 0xaaaaaaaa' % (S_M0 + 1))
    C = (128.0 ** -0.5) * math.log2(math.e)
    import struct
    a('s_mov_b32 s%d, 0x%08x' % (S_C, struct.unpack('<I', struct.pack('<f', C))[0]))
    a('s_mov_b32 s%d, 0xffff0000' % S_HI)
    SM, SN = V_T + 4, V_T + 5
    a('v_and_b32 v%d, 16, v0' % SM)
    a('v_lshlrev_b32 v%d, 27, v%d' % (SN, SM))
    a('v_xor_b32 v%d, 0x80000000, v%d' % (SM, SN))
    a.wait_vm('q')
    T0, T1, T2, T3 = V_T, V_T + 1, V_T + 6, V_T + 7
    T4, T5 = V_T + 8, V_T + 9
    def unpack(dst, base, j):
        r = base + j // 2
        if j % 2 == 0:
            a('v_lshlrev_b32 v%d, 16, v%d' % (dst, r))
        else:
            a('v_and_b32 v%d, s%d, v%d' % (dst, S_HI, r))
    for j in range(4):
        unpack(T0, QA, j); unpack(T1, CA, j); unpack(T2, QB, j); unpack(T3, SA, j)
        a('v_mul_f32 v%d, v%d, v%d' % (T1, T0, T1))
        a('v_xor_b32 v%d, v%d, v%d' % (T4, SM, T2))
        a('v_mul_f32 v%d, v%d, v%d' % (T3, T4, T3))
        a('v_cvt_pk_bf16_f32 v%d, v%d, v%d' % (T1, T1, T3))
        a('v_lshlrev_b32 v%d, 16, v%d' % (T3, T1))
        a('v_and_b32 v%d, s%d, v%d' % (T1, S_HI, T1))
        a('v_add_f32 v%d, v%d, v%d' % (T5, T1, T3))
        unpack(T1, CB, j); unpack(T3, SB, j)
        a('v_mul_f32 v%d, v%d, v%d' % (T1, T2, T1))
        a('v_xor_b32 v%d, v%d, v%d' % (T4, SN, T0))
        a('v_mul_f32 v%d, v%d, v%d' % (T3, T4, T3))
        a('v_cvt_pk_bf16_f32 v%d, v%d, v%d' % (T1, T1, T3))
        a('v_lshlrev_b32 v%d, 16, v%d' % (T3, T1))
        a('v_and_b32 v%d, s%d, v%d' % (T1, S_HI, T1))
        a('v_add_f32 v%d, v%d, v%d' % (T1, T1, T3))
        a('v_xor_b32 v%d, v%d, v%d' % (T1, SN, T1))
        a('v_cvt_pk_bf16_f32 v%d, v%d, v%d' % (V_QP + j, T5, T1))
    a.wait_vm('kz')
    a('v_lshlrev_b32 v%d, 16, v%d' % (V_KZ, V_KZ))
    def k_step(i):
        K, Cc, Ss = slotK(i), slotC(i), slotS(i)
        a.wait_vm('s%d' % i)
        P = V_T
        a('v_perm_b32 v%d, v%d, v%d, s%d' % (P + 0, Ss, Cc, S_SEL_LO))
        a('v_perm_b32 v%d, v%d, v%d, s%d' % (P + 1, Ss, Cc, S_SEL_HI))
        a('v_perm_b32 v%d, v%d, v%d, s%d' % (P + 2, Ss + 1, Cc + 1, S_SEL_LO))
        a('v_perm_b32 v%d, v%d, v%d, s%d' % (P + 3, Ss + 1, Cc + 1, S_SEL_HI))
        for j in range(4):
            a('v_dot2_f32_bf16 v%d, v%d, v%d, 0' % (P + 4 + j, P + j, V_QP + j))
        for j in range(4):
            a('v_cvt_f32_i32 v%d, v%d' % (K + j, K + j))
        for j in range(4):
            a('v_subrev_f32_dpp v%d, v%d, v%d row_newbcast:%d row_mask:0xf bank_mask:0xf' % (K + j, V_KZ, K + j, i))
        a('v_mul_f32 v%d, v%d, v%d' % (V_S + i, K + 0, P + 4))
        for j in range(1, 4):
            a('v_fmac_f32 v%d, v%d, v%d' % (V_S + i, K + j, P + 4 + j))
    for i in range(16):
        k_step(i)
        if i == 0: stamp(1)
        if i + nslots < 16:
            issue_k(i + nslots)
        else:
            sl = i % nslots
            if sl < 8:
                issue_v(2 * sl); issue_v(2 * sl + 1)
    a('s_nop 1')
    for i in range(8):
        a('v_add_f32_dpp v%d, v%d, v%d row_mirror row_mask:0xf bank_mask:0x3' % (V_S + i, V_S + i, V_S + i))
    for i in range(8):
        a('v_add_f32_dpp v%d, v%d, v%d row_mirror row_mask:0xf bank_mask:0xc' % (V_S + i, V_S + 8 + i, V_S + 8 + i))
    for i in range(4):
        a('v_add_f32_dpp v%d, v%d, v%d row_half_mirror row_mask:0xf bank_mask:0x5' % (V_S + i, V_S + i, V_S + i))
    for i in range(4):
        a('v_add_f32_dpp v%d, v%d, v%d row_half_mirror row_mask:0xf bank_mask:0xa' % (V_S + i, V_S + 4 + i, V_S + 4 + i))
    for i in range(4):
        a('v_add_f32_dpp v%d, v%d, v%d quad_perm:[2,3,0,1] row_mask:0xf bank_mask:0xf' % (V_S + 4 + i, V_S + i, V_S + i))
    a('v_cndmask_b32 v%d, v%d, v%d, s[%d:%d]' % (V_S, V_S + 4, V_S + 6, S_M1, S_M1 + 1))
    a('v_cndmask_b32 v%d, v%d, v%d, s[%d:%d]' % (V_S + 1, V_S + 5, V_S + 7, S_M1, S_M1 + 1))
    a('s_nop 0')
    a('v_add_f32_dpp v%d, v%d, v%d quad_perm:[1,0,3,2] row_mask:0xf bank_mask:0xf' % (V_S + 2, V_S, V_S))
    a('v_add_f32_dpp v%d, v%d, v%d quad_perm:[1,0,3,2] row_mask:0xf bank_mask:0xf' % (V_S + 3, V_S + 1, V_S + 1))
    a('v_cndmask_b32 v%d, v%d, v%d, s[%d:%d]' % (V_S, V_S + 2, V_S + 3, S_M0, S_M0 + 1))
    a.wait_vm_if('vz')
    a('v_lshlrev_b32 v%d, 16, v%d' % (V_KS, V_KS))
    a('v_lshlrev_b32 v%d, 16, v%d' % (V_VS, V_VS))
    a('v_lshlrev_b32 v%d, 16, v%d' % (V_VZ, V_VZ))
    LG, X, Y = V_S, V_S + 1, V_S + 2
    a('v_mul_f32 v%d, v%d, v%d' % (LG, LG, V_KS))
    a('v_mov_b32 v%d, v%d' % (X, LG))
    a('s_nop 1')
    a('v_permlane16_swap_b32 v%d, v%d' % (LG, X))
    a('v_add_f32 v%d, v%d, v%d' % (LG, LG, X))
    a('v_mul_f32 v%d, s%d, v%d' % (LG, S_C, LG))
    a('s_nop 1')
    a('v_max_f32_dpp v%d, v%d, v%d row_ror:8 row_mask:0xf bank_mask:0xf' % (X, LG, LG))
    for n in (4, 2, 1):
        a('s_nop 1')
        a('v_max_f32_dpp v%d, v%d, v%d row_ror:%d row_mask:0xf bank_mask:0xf' % (X, X, X, n))
    a('v_mov_b32 v%d, v%d' % (Y, X))
    a('s_nop 1')
    a('v_permlane32_swap_b32 v%d, v%d' % (X, Y))
    a('v_max_f32 v%d, v%d, v%d' % (X, X, Y))
    a('s_lshl_b32 s%d, s%d, 2' % (S_TMP, S_WAVE))
    a('v_mov_b32 v%d, s%d' % (Y, S_TMP))
    a('ds_write_b32 v%d, v%d' % (Y, X))
    a('v_and_b32 v%d, 15, v0' % Y)
    a('v_lshlrev_b32 v%d, 2, v%d' % (Y, Y))
    a('s_waitcnt lgkmcnt(0)')
    stamp(2)
    a('s_barrier')
    a('ds_read_b32 v%d, v%d' % (X, Y))
    a('s_waitcnt lgkmcnt(0)')
    for n in (8, 4, 2, 1):
        a('s_nop 1')
        a('v_max_f32_dpp v%d, v%d, v%d row_ror:%d row_mask:0xf bank_mask:0xf' % (X, X, X, n))
    VM = V_S + 3
    a('v_mov_b32 v%d, v%d' % (VM, X))
    PP, AA, AZ = V_S + 4, V_S + 5, V_S + 6
    a('v_sub_f32 v%d, v%d, v%d' % (PP, LG, VM))
    a('v_exp_f32 v%d, v%d' % (PP, PP))
    a('s_nop 0')
    a('v_mul_f32 v%d, v%d, v%d' % (AA, PP, V_VS))
    a('v_mul_f32 v%d, v%d, v%d' % (AZ, AA, V_VZ))
    for n in (8, 4, 2, 1):
        a('s_nop 0')
        a('v_add_f32_dpp v%d, v%d, v%d row_ror:%d row_mask:0xf bank_mask:0xf' % (PP, PP, PP, n))
        a('s_nop 0') if n == 8 else None
        a('v_add_f32_dpp v%d, v%d, v%d row_ror:%d row_mask:0xf bank_mask:0xf' % (AZ, AZ, AZ, n))
    a('s_nop 0')
    for j in range(4):
        a('v_sub_f32 v%d, 0, v%d' % (V_O + j, AZ))
    VL = V_S + 7
    a('v_mov_b32 v%d, v%d' % (VL, PP))
    a('s_nop 1')
    a('v_permlane32_swap_b32 v%d, v%d' % (PP, VL))
    a('v_add_f32 v%d, v%d, v%d' % (VL, VL, PP))
    for i in range(16):
        R = slotV(i)
        a.wait_vm('v%d' % i)
        for j in range(4):
            a('v_cvt_f32_i32 v%d, v%d' % (R + j, R + j))
        for j in range(4):
            a('v_fmac_f32_dpp v%d, v%d, v%d row_newbcast:%d row_mask:0xf bank_mask:0xf' % (V_O + j, AA, R + j, i))
    stamp(3)
    a('s_nop 1')
    a('v_permlane32_swap_b32 v%d, v%d' % (V_O, V_O + 2))
    a('v_permlane32_swap_b32 v%d, v%d' % (V_O + 1, V_O + 3))
    E = V_T + 2
    assert E % 4 == 0
    a('v_add_f32 v%d, v%d, v%d' % (E, V_O, V_O + 2))
    a('v_add_f32 v%d, v%d, v%d' % (E + 1, V_O + 1, V_O + 3))
    a('v_mov_b32 v%d, v%d' % (E + 2, VL))
    a('v_mov_b32 v%d, v%d' % (E + 3, VM))
    a('s_lshl_b32 s%d, s%d, 10' % (S_TMP, S_WAVE))
    a('v_add_u32 v%d, s%d, v%d' % (V_T, S_TMP, V_O16))
    a('ds_write_b128 v%d, %s offset:1024' % (V_T, v(E, 4)))
    a('s_waitcnt lgkmcnt(0)')
    a('s_barrier')
    a('s_cmp_lg_u32 s%d, 0' % S_WAVE)
    a('s_cbranch_scc1 L_end')
    stamp(4)
    if stamps: a('s_waitcnt lgkmcnt(0)')
    for w in range(16):
        a('ds_read_b128 %s, v%d offset:%d' % (v(V_SLOT + 4 * w, 4), V_O16, 1024 + 1024 * w))
    for w in range(1, 16):
        a('s_waitcnt lgkmcnt(%d)' % (15 - w))
        if w == 1:
            for j in range(3):
                a('v_add_f32 v%d, v%d, v%d' % (E + j, V_SLOT + j, V_SLOT + 4 + j))
        else:
            for j in range(3):
                a('v_add_f32 v%d, v%d, v%d' % (E + j, E + j, V_SLOT + 4 * w + j))
    a('s_lshl_b32 s%d, s2, 10' % S_RECOFF)
    a.vm = []
    a.vmem('buffer_store_dwordx4 %s, v%d, %s, s%d offen sc1' % (v(E, 4), V_O16, srd('ws'), S_RECOFF), 'st')
    a.wait_vm_all()
    a('s_mov_b64 exec, 1')
    a('v_mov_b32 v%d, 1' % V_T)
    a('s_lshl_b32 s%d, s%d, 4' % (S_TMP, S_HEAD))
    a('buffer_atomic_add v%d, off, %s, s%d sc0 sc1' % (V_T, srd('dbg'), S_TMP))
    a('s_waitcnt vmcnt(0)')
    a('v_readfirstlane_b32 s%d, v%d' % (S_TMP, V_T))
    a('s_mov_b64 exec, -1')
    stamp(5)
    a('s_cmp_lg_u32 s%d, 15' % S_TMP)
    a('s_cbranch_scc1 L_notlast' if stamps else 's_cbranch_scc1 L_end')
    a('s_lshl_b32 s%d, s%d, 14' % (S_RECOFF, S_HEAD))
    for i in range(16):
        a('s_add_u32 s%d, s%d, %d' % (S_TMP, S_RECOFF, (i // 4) * 4096)) if i % 4 == 0 else None
        a.vmem('buffer_load_dwordx4 %s, v%d, %s, s%d offen offset:%d sc1' % (
            v(V_SLOT + 4 * i, 4), V_O16, srd('ws'), S_TMP, (i % 4) * 1024), 'r%d' % i)
    a.wait_vm_all()
    R = lambda i, j: V_SLOT + 4 * i + j
    MG = V_T
    a('v_max3_f32 v%d, v%d, v%d, v%d' % (MG, R(0, 3), R(1, 3), R(2, 3)))
    for i in range(3, 15, 2):
        a('v_max3_f32 v%d, v%d, v%d, v%d' % (MG, MG, R(i, 3), R(i + 1, 3)))
    a('v_max_f32 v%d, v%d, v%d' % (MG, MG, R(15, 3)))
    for i in range(16):
        a('v_sub_f32 v%d, v%d, v%d' % (R(i, 3), R(i, 3), MG))
    for i in range(16):
        a('v_exp_f32 v%d, v%d' % (R(i, 3), R(i, 3)))
    a('s_nop 0')
    for j in range(3):
        a('v_mul_f32 v%d, v%d, v%d' % (E + j, R(0, j), R(0, 3)))
    for i in range(1, 16):
        for j in range(3):
            a('v_fmac_f32 v%d, v%d, v%d' % (E + j, R(i, j), R(i, 3)))
    a('v_rcp_f32 v%d, v%d' % (E + 2, E + 2))
    a('s_nop 0')
    a('v_mul_f32 v%d, v%d, v%d' % (E, E, E + 2))
    a('v_mul_f32 v%d, v%d, v%d' % (E + 1, E + 1, E + 2))
    a('v_cvt_pk_bf16_f32 v%d, v%d, v%d' % (E, E, E + 1))
    a('v_and_b32 v%d, 31, v0' % V_T)
    a('v_lshlrev_b32 v%d, 3, v%d' % (V_T, V_T))
    a('v_lshrrev_b32 v%d, 5, v0' % (V_T + 1))
    a('v_lshl_add_u32 v%d, v%d, 2, v%d' % (V_T, V_T + 1, V_T))
    a('buffer_store_dword v%d, v%d, %s, s%d offen' % (E, V_T, srd('out'), S_QOFF))
    if enc:
        a('s_waitcnt vmcnt(0)')
        a('s_memrealtime s[24:25]')
        a('s_waitcnt lgkmcnt(0)')
        a('s_sub_u32 s26, s24, s100')
        a('s_mul_i32 s26, s26, %d' % enc)
        a.label('L_spin')
        a('s_memrealtime s[28:29]')
        a('s_waitcnt lgkmcnt(0)')
        a('s_sub_u32 s27, s28, s24')
        a('s_cmp_lt_u32 s27, s26')
        a('s_cbranch_scc1 L_spin')
    if stamps:
        a('s_waitcnt vmcnt(0)')
        stamp(6)
        flush_stamps(6)
        a('s_endpgm')
        a.label('L_notlast')
        flush_stamps(5)
    a.label('L_end')
    a('s_endpgm')
    launch = '; @launch grid=(256,1,1) block=(1024,1,1) lds=17408'
    return wrap(a.text(), launch, NV)

if __name__ == '__main__':
    kw = {}
    for arg in sys.argv[2:]:
        k, val = arg.split('=')
        kw[k] = int(val) if val.lstrip('-').isdigit() else val
    open(sys.argv[1], 'w').write(gen(**kw))
```

```python
import struct, math
INV_HEX = ['0x3f800000', '0x3f5dafd7', '0x3f3ff911', '0x3f263de0', '0x3f0ff59a', '0x3ef953cf', '0x3ed7e89b', '0x3ebaf81b', '0x3ea1e89b', '0x3e8c3504', '0x3e72d423', '0x3e5247ed', '0x3e361887', '0x3e1db040', '0x3e088d77', '0x3dec7fd6', '0x3dcccccd', '0x3db15978', '0x3d99940d', '0x3d84fe4d', '0x3d6655c2', '0x3d47763f', '0x3d2cba15', '0x3d159348', '0x3d0186e3', '0x3ce054d2', '0x3cc2434f', '0x3ca8398b', '0x3c91ad39', '0x3c7c4d33', '0x3c5a7bf2', '0x3c3d3311', '0x3c23d70a', '0x3c0de12d', '0x3bf5b9b0', '0x3bd4ca15', '0x3bb8449c', '0x3b9f91cc', '0x3b8a2e77', '0x3b6f520e', '0x3b4f3e38', '0x3b33770f', '0x3b1b690d', '0x3b06946f', '0x3ae91528', '0x3ac9d75c', '0x3aaec98e', '0x3a975c0e', '0x3a83126f', '0x3a6301e2', '0x3a44948c', '0x3a2a3b44', '0x3a136a16', '0x39ff4fac', '0x39dd1725', '0x39bf74d7', '0x39a5cb60', '0x398f9272', '0x3978a815', '0x395753e4', '0x393a7753', '0x39217916', '0x390bd472', '0x38f22ce2']
def u2f(u): return struct.unpack('<f', struct.pack('<I', u))[0]
def f2u(f): return struct.unpack('<I', struct.pack('<f', f))[0]
INV = [u2f(int(h, 16)) for h in INV_HEX]
def split_hi(x, bits=11):
    m, e = math.frexp(x)
    mh = round(m * (1 << bits)) / (1 << bits)
    return math.ldexp(mh, e)
def rope_tables(stride):
    rh, rl, c2, sd = [], [], [], []
    for inv in INV:
        R = inv / (2 * math.pi)
        h = split_hi(R)
        rh.append(f2u(h)); rl.append(f2u(R - h))
        c2.append(f2u(2 * math.cos(stride * inv))); sd.append(f2u(math.sin(stride * inv)))
    return rh, rl, c2, sd
```

```python
import sys, math, struct
from asmlib import *
from consts import rope_tables, f2u

def make_order(order):
    if order == 'kv':
        return [('k', i) for i in range(16)] + [('v', i) for i in range(16)]
    if order == 'x':
        n = 0
    else:
        n = int(order[1:])
    seq = [('k', i) for i in range(n)]
    for i in range(16):
        if i + n < 16: seq.append(('k', i + n))
        seq.append(('v', i))
    if n == 0:
        pass
    return seq

def gen(kv_flags='nt', order='h8', ns=22, first=4, kk=0, map=1, stamps=0, enc=0, vearly=0):
    a = Asm()
    seq = make_order(order)
    if vearly:
        seq.remove(('v', 0)); seq.insert(vearly - 1, ('v', 0))
    assert len(seq) == 32
    S_WAVE = 3
    S_KOFF = 4
    S_SCOFF, S_QOFF, S_HEAD, S_TMP, S_T0 = 10, 11, 12, 13, 14
    S_TBL = 8
    SRD = dict(qk=44, qv=48, ks=52, kz=56, vs=60, vz=64, q=68, qcos=72, qsin=76, out=80, ws=84, dbg=88)
    karg = dict(q=16, qk=18, ks=20, kz=22, qv=24, vs=26, vz=28, qcos=30, qsin=32, out=38, dbg=40, ws=42)
    size = dict(qk=1 << 26, qv=1 << 26, ks=1 << 19, kz=1 << 19, vs=1 << 19, vz=1 << 19,
                q=4096, qcos=256, qsin=256, out=4096, ws=1 << 21, dbg=256)
    S_M1, S_M0, S_M16 = 16, 18, 20
    S_C, S_HI, S_RECOFF = 22, 23, 15
    S_SOFF = 92
    def srd(n): return s(SRD[n], 4)
    V_O16, V_OSC = 1, 2
    V_KZ, V_KS, V_VS, V_VZ, V_B = 3, 4, 5, 6, 7
    V_W = [8, 12]
    V_C2 = 16
    V_O = 20
    V_S = 24; V_TT = 32
    V_T = 33
    V_SLOT = 40
    NV = V_SLOT + 4 * ns
    assert NV <= 128
    stepb = 1024 << kk
    stride_tok = 2 << kk
    groups = sorted(set((i * stepb) // 4096 * 4096 for i in range(16)))
    soff_reg = {g: S_SOFF + n for n, g in enumerate(groups)} if len(groups) <= 8 else None
    def kv_addr(i):
        off = i * stepb
        g = off // 4096 * 4096
        if soff_reg is not None:
            return 's%d' % soff_reg[g], off - g
        a('s_add_u32 s%d, s%d, %d' % (S_TMP, S_KOFF, g))
        return 's%d' % S_TMP, off - g

    NST = 8
    def stamp(k):
        if stamps:
            r = 100 if k == 0 else 24 + 2 * (k - 1)
            a('s_memrealtime s[%d:%d]' % (r, r + 1))
    def flush_stamps(k_last):
        if not stamps: return
        a('s_waitcnt lgkmcnt(0)')
        a('s_mul_i32 s13, s2, %d' % (NST * 4))
        a('s_add_u32 s13, s13, 0x100000')
        a('s_mov_b64 exec, 1')
        a('s_getreg_b32 s40, hwreg(HW_REG_XCC_ID)')
        for k in range(NST):
            kk_ = min(k, k_last)
            r = 100 if kk_ == 0 else 24 + 2 * (kk_ - 1)
            if k == NST - 1: r = 40
            a('v_mov_b32 v%d, s%d' % (V_T + 6, r))
            a('buffer_store_dword v%d, off, %s, s13 offset:%d' % (V_T + 6, srd('ws'), 4 * k))
            a('s_nop 1')
        a('s_mov_b64 exec, -1')

    a('s_cmp_ge_u32 s2, 256')
    a('s_cbranch_scc1 L_end')
    stamp(0)
    if enc: a('s_memrealtime s[100:101]')
    a('s_load_dwordx16 s[16:31], s[0:1], 0')
    a('s_load_dwordx8 s[32:39], s[0:1], 64')
    a('s_load_dwordx4 s[40:43], s[0:1], 96')
    a('v_lshrrev_b32 v1, 6, v0')
    a('v_and_b32 v0, 63, v0')
    a('v_readfirstlane_b32 s%d, v1' % S_WAVE)
    a('v_lshlrev_b32 v%d, 4, v0' % V_O16)
    if map == 1:
        a('s_and_b32 s%d, s2, 7' % S_TMP)
        a('s_lshl_b32 s%d, s%d, 5' % (S_TMP, S_TMP))
        a('s_lshr_b32 s%d, s2, 3' % S_T0)
        a('s_add_u32 s%d, s%d, s%d' % (S_RECOFF, S_TMP, S_T0))
    else:
        a('s_mov_b32 s%d, s2' % S_RECOFF)
    a('s_lshr_b32 s%d, s%d, 4' % (S_HEAD, S_RECOFF))
    a('s_lshr_b32 s%d, s%d, %d' % (S_TMP, S_WAVE, kk))
    a('s_lshl_b32 s%d, s%d, %d' % (S_TMP, S_TMP, 4 + kk))
    a('s_and_b32 s%d, s%d, %d' % (S_T0, S_WAVE, (1 << kk) - 1))
    a('s_add_u32 s%d, s%d, s%d' % (S_TMP, S_TMP, S_T0))
    a('s_lshl_b32 s%d, s%d, 18' % (S_KOFF, S_RECOFF))
    a('s_lshl_b32 s%d, s%d, 10' % (S_T0, S_TMP))
    a('s_add_u32 s%d, s%d, s%d' % (S_KOFF, S_KOFF, S_T0))
    if soff_reg is not None:
        for g, r in soff_reg.items():
            a('s_add_u32 s%d, s%d, %d' % (r, S_KOFF, g))
    a('s_and_b32 s%d, s%d, 15' % (S_T0, S_RECOFF))
    a('s_lshl_b32 s%d, s%d, 9' % (S_T0, S_T0))
    a('s_lshl_b32 s%d, s%d, 1' % (S_TMP, S_TMP))
    a('s_add_u32 s%d, s%d, s%d' % (S_T0, S_T0, S_TMP))
    a('s_lshl_b32 s%d, s%d, 15' % (S_SCOFF, S_HEAD))
    a('s_lshl_b32 s%d, s%d, 2' % (S_TMP, S_T0))
    a('s_add_u32 s%d, s%d, s%d' % (S_SCOFF, S_SCOFF, S_TMP))
    a('s_lshl_b32 s%d, s%d, 8' % (S_QOFF, S_HEAD))
    for n in ('qk', 'qv'):
        a('s_mov_b32 s%d, 0x%x' % (SRD[n] + 2, size[n]))
        a('s_mov_b32 s%d, 0x00020000' % (SRD[n] + 3))
    a('v_and_b32 v%d, 15, v0' % V_T)
    a('v_lshlrev_b32 v%d, %d, v%d' % (V_T + 1, 3 + kk, V_T))
    a('v_lshrrev_b32 v%d, 4, v0' % (V_T + 2))
    a('v_lshl_add_u32 v%d, v%d, 1, v%d' % (V_OSC, V_T + 2, V_T + 1))
    VCO, VQA, VQB = V_T + 3, V_T + 4, V_T + 5
    a('v_lshlrev_b32 v%d, 4, v%d' % (VCO, V_T))
    a('v_lshlrev_b32 v%d, 3, v0' % VQA)
    a('v_and_b32 v%d, 0xff, v%d' % (VQA, VQA))
    a('v_xor_b32 v%d, 0x80, v%d' % (VQB, VQA))
    a('s_getpc_b64 s[%d:%d]' % (S_TBL, S_TBL + 1))
    a.label('L_pc')
    a('s_add_u32 s%d, s%d, rope_consts-L_pc' % (S_TBL, S_TBL))
    a('s_addc_u32 s%d, s%d, 0' % (S_TBL + 1, S_TBL + 1))
    a('s_waitcnt lgkmcnt(0)')
    def mksrd(n, full=True):
        a('s_mov_b64 s[%d:%d], s[%d:%d]' % (SRD[n], SRD[n] + 1, karg[n], karg[n] + 1))
        if full:
            a('s_mov_b32 s%d, 0x%x' % (SRD[n] + 2, size[n]))
            a('s_mov_b32 s%d, 0x00020000' % (SRD[n] + 3))
    mksrd('qk', False); mksrd('qv', False)
    free = list(range(ns))
    where = {}
    nxt = [0]
    def slot_reg(sl): return V_SLOT + 4 * sl
    def issue_next():
        if nxt[0] >= len(seq): return False
        kind, i = seq[nxt[0]]; nxt[0] += 1
        sl = free.pop(0)
        where[(kind, i)] = sl
        so, imm = kv_addr(i)
        a.vmem('buffer_load_dwordx4 %s, v%d, %s, %s offen offset:%d %s' % (
            v(slot_reg(sl), 4), V_O16, srd('qk' if kind == 'k' else 'qv'), so, imm, kv_flags), '%s%d' % (kind, i))
        return True
    late = [free.pop(), free.pop(), free.pop()]
    RH, RL, SD = slot_reg(late[0]), slot_reg(late[1]), slot_reg(late[2])
    for _ in range(first):
        issue_next()
    for n in ('q', 'qcos', 'qsin', 'kz', 'ks', 'vs', 'vz'):
        mksrd(n)
    QA, QB, CA, SA = V_S, V_S + 2, V_S + 4, V_S + 6
    a.vmem('buffer_load_dwordx2 %s, v%d, %s, s%d offen' % (v(QA, 2), VQA, srd('q'), S_QOFF), 'q')
    a.vmem('buffer_load_dwordx2 %s, v%d, %s, s%d offen' % (v(QB, 2), VQB, srd('q'), S_QOFF), 'q')
    a.vmem('buffer_load_dwordx2 %s, v%d, %s, 0 offen' % (v(CA, 2), VQA, srd('qcos')), 'q')
    a.vmem('buffer_load_dwordx2 %s, v%d, %s, 0 offen' % (v(SA, 2), VQA, srd('qsin')), 'q')
    a.vmem('global_load_dwordx4 %s, v%d, s[%d:%d]' % (v(RH, 4), VCO, S_TBL, S_TBL + 1), 'c')
    a.vmem('global_load_dwordx4 %s, v%d, s[%d:%d] offset:256' % (v(RL, 4), VCO, S_TBL, S_TBL + 1), 'c')
    a.vmem('global_load_dwordx4 %s, v%d, s[%d:%d] offset:512' % (v(V_C2, 4), VCO, S_TBL, S_TBL + 1), 'c')
    a.vmem('global_load_dwordx4 %s, v%d, s[%d:%d] offset:768' % (v(SD, 4), VCO, S_TBL, S_TBL + 1), 'c')
    a.vmem('buffer_load_ushort v%d, v%d, %s, s%d offen' % (V_KZ, V_OSC, srd('kz'), S_SCOFF), 'kz')
    a.vmem('buffer_load_ushort v%d, v%d, %s, s%d offen' % (V_KS, V_OSC, srd('ks'), S_SCOFF), 'sc')
    a.vmem('buffer_load_ushort v%d, v%d, %s, s%d offen' % (V_VS, V_OSC, srd('vs'), S_SCOFF), 'sc')
    a.vmem('buffer_load_ushort v%d, v%d, %s, s%d offen' % (V_VZ, V_OSC, srd('vz'), S_SCOFF), 'sc')
    while free:
        if not issue_next(): break
    for n in ('out', 'ws', 'dbg'):
        mksrd(n)
    for r, val in ((S_M1, 0xcccccccc), (S_M0, 0xaaaaaaaa), (S_M16, 0xffff0000)):
        a('s_mov_b32 s%d, 0x%x' % (r, val)); a('s_mov_b32 s%d, 0x%x' % (r + 1, val))
    a('s_mov_b32 s%d, 0x%08x' % (S_C, f2u((128.0 ** -0.5) * math.log2(math.e))))
    a('s_mov_b32 s%d, 0xffff0000' % S_HI)
    T0, T1, T2, T3, SM, SN, TF = V_T, V_T + 1, V_T + 2, V_T + 3, V_T + 4, V_T + 5, V_T + 6
    QRA, QRB = V_W[1], V_O
    a('v_and_b32 v%d, 16, v0' % SM)
    a('v_lshlrev_b32 v%d, 27, v%d' % (SN, SM))
    a('v_xor_b32 v%d, 0x80000000, v%d' % (SM, SN))
    a('v_lshrrev_b32 v%d, 5, v0' % TF)
    a('v_add_u32 v%d, s%d, v%d' % (TF, S_T0, TF))
    a('v_cvt_f32_u32 v%d, v%d' % (TF, TF))
    a.wait_vm('q')
    def unpack(dst, base, j):
        r = base + j // 2
        if j % 2 == 0: a('v_lshlrev_b32 v%d, 16, v%d' % (dst, r))
        else: a('v_and_b32 v%d, s%d, v%d' % (dst, S_HI, r))
    for j in range(4):
        unpack(T0, QA, j); unpack(T1, CA, j); unpack(T2, QB, j); unpack(T3, SA, j)
        a('v_mul_f32 v%d, v%d, v%d' % (T1, T0, T1))
        a('v_xor_b32 v%d, v%d, v%d' % (T2, SM, T2))
        a('v_mul_f32 v%d, v%d, v%d' % (T3, T2, T3))
        a('v_cvt_pk_bf16_f32 v%d, v%d, v%d' % (T1, T1, T3))
        a('v_lshlrev_b32 v%d, 16, v%d' % (T3, T1))
        a('v_and_b32 v%d, s%d, v%d' % (T1, S_HI, T1))
        a('v_add_f32 v%d, v%d, v%d' % (QRA + j, T1, T3))
    for j in (0, 2):
        a('v_cvt_pk_bf16_f32 v%d, v%d, v%d' % (T0, QRA + j, QRA + j + 1))
        a('v_lshlrev_b32 v%d, 16, v%d' % (QRA + j, T0))
        a('v_and_b32 v%d, s%d, v%d' % (QRA + j + 1, S_HI, T0))
    for j in range(4):
        a('v_mov_b32 v%d, v%d' % (QRB + j, QRA + j))
        a('v_mov_b32 v%d, v%d' % (V_S + j, QRA + j))
    a('s_nop 1')
    for j in range(4):
        a('v_permlane16_swap_b32 v%d, v%d' % (QRB + j, V_S + j))
    for j in range(4):
        a('v_cndmask_b32 v%d, v%d, v%d, s[%d:%d]' % (QRB + j, V_S + j, QRB + j, S_M16, S_M16 + 1))
    for j in range(4):
        a('v_xor_b32 v%d, v%d, v%d' % (QRB + j, SN, QRB + j))
    a.wait_vm('c')
    for j in range(4):
        a('v_mul_f32 v%d, v%d, v%d' % (RH + j, TF, RH + j))
    for j in range(4):
        a('v_fract_f32 v%d, v%d' % (RH + j, RH + j))
    for j in range(4):
        a('v_fmac_f32 v%d, v%d, v%d' % (RH + j, TF, RL + j))
    for j in range(4):
        a('v_sin_f32 v%d, v%d' % (RL + j, RH + j))
    for j in range(4):
        a('v_cos_f32 v%d, v%d' % (RH + j, RH + j))
    W0, W1 = V_W
    a('s_nop 0')
    for j in range(4):
        a('v_mul_f32 v%d, v%d, v%d' % (W0 + j, QRA + j, RH + j))
    for j in range(4):
        a('v_fmac_f32 v%d, v%d, v%d' % (W0 + j, QRB + j, RL + j))
    for j in range(4):
        a('v_mul_f32 v%d, v%d, v%d' % (V_S + j, QRB + j, RH + j))
    for j in range(4):
        a('v_fma_f32 v%d, -v%d, v%d, v%d' % (V_S + j, QRA + j, RL + j, V_S + j))
    for j in range(4):
        a('v_mul_f32 v%d, v%d, v%d' % (W1 + j, V_C2 + j, W0 + j))
    for j in range(4):
        a('v_mul_f32 v%d, v%d, v%d' % (V_S + j, SD + j, V_S + j))
    for j in range(4):
        a('v_fma_f32 v%d, v%d, 0.5, -v%d' % (W1 + j, W1 + j, V_S + j))
    for sl in late: free.append(sl)
    while free:
        if not issue_next(): break
    a.wait_vm_if('kz')
    a('v_lshlrev_b32 v%d, 16, v%d' % (V_KZ, V_KZ))
    def dpp(op, d, s0, s1, ctrl, bank=0xf):
        if s1 is None:
            a('%s v%d, v%d %s row_mask:0xf bank_mask:0x%x' % (op, d, s0, ctrl, bank))
        else:
            a('%s v%d, v%d, v%d %s row_mask:0xf bank_mask:0x%x' % (op, d, s0, s1, ctrl, bank))
    a('s_nop 1')
    for i in range(16):
        K = slot_reg(where[('k', i)])
        cur, prev = V_W[i & 1], V_W[(i + 1) & 1]
        dpp('v_mov_b32_dpp', V_B, V_KZ, None, 'row_newbcast:%d' % i)
        a.wait_vm_if('k%d' % i)
        if i == 0: stamp(1)
        for j in range(4):
            a('v_cvt_f32_i32 v%d, v%d' % (K + j, K + j))
        for j in range(4):
            a('v_sub_f32 v%d, v%d, v%d' % (K + j, K + j, V_B))
        D = V_S + i if i < 8 else V_TT
        a('v_mul_f32 v%d, v%d, v%d' % (D, K, cur))
        for j in range(1, 4):
            a('v_fmac_f32 v%d, v%d, v%d' % (D, K + j, cur + j))
        free.append(where[('k', i)])
        issue_next()
        if i < 15:
            for j in range(4):
                a('v_fma_f32 v%d, v%d, v%d, -v%d' % (prev + j, V_C2 + j, cur + j, prev + j))
        else:
            a('s_nop 1')
        if i >= 8:
            dpp('v_add_f32_dpp', V_S + i - 8, V_S + i - 8, V_S + i - 8, 'row_mirror', 0x3)
            dpp('v_add_f32_dpp', V_S + i - 8, V_TT, V_TT, 'row_mirror', 0xc)
    while free:
        if not issue_next(): break
    assert nxt[0] == len(seq)
    stamp(2)
    a('s_nop 1')
    for i in range(4):
        dpp('v_add_f32_dpp', V_S + i, V_S + i, V_S + i, 'row_half_mirror', 0x5)
    for i in range(4):
        dpp('v_add_f32_dpp', V_S + i, V_S + 4 + i, V_S + 4 + i, 'row_half_mirror', 0xa)
    for i in range(4):
        dpp('v_add_f32_dpp', V_S + 4 + i, V_S + i, V_S + i, 'quad_perm:[2,3,0,1]')
    a('v_cndmask_b32 v%d, v%d, v%d, s[%d:%d]' % (V_S, V_S + 4, V_S + 6, S_M1, S_M1 + 1))
    a('v_cndmask_b32 v%d, v%d, v%d, s[%d:%d]' % (V_S + 1, V_S + 5, V_S + 7, S_M1, S_M1 + 1))
    a.wait_vm_if('sc')
    a('v_lshlrev_b32 v%d, 16, v%d' % (V_KS, V_KS))
    dpp('v_add_f32_dpp', V_S + 2, V_S, V_S, 'quad_perm:[1,0,3,2]')
    dpp('v_add_f32_dpp', V_S + 3, V_S + 1, V_S + 1, 'quad_perm:[1,0,3,2]')
    a('v_lshlrev_b32 v%d, 16, v%d' % (V_VS, V_VS))
    a('v_cndmask_b32 v%d, v%d, v%d, s[%d:%d]' % (V_S, V_S + 2, V_S + 3, S_M0, S_M0 + 1))
    LG, X, Y = V_S, V_S + 1, V_S + 2
    a('v_mul_f32 v%d, v%d, v%d' % (LG, LG, V_KS))
    a('v_lshlrev_b32 v%d, 16, v%d' % (V_VZ, V_VZ))
    a('v_mov_b32 v%d, v%d' % (X, LG))
    a('s_nop 1')
    a('v_permlane16_swap_b32 v%d, v%d' % (LG, X))
    a('v_add_f32 v%d, v%d, v%d' % (LG, LG, X))
    a('v_mul_f32 v%d, s%d, v%d' % (LG, S_C, LG))
    a('s_nop 1')
    dpp('v_max_f32_dpp', X, LG, LG, 'row_ror:8')
    for n in (4, 2, 1):
        a('s_nop 1')
        dpp('v_max_f32_dpp', X, X, X, 'row_ror:%d' % n)
    a('v_mov_b32 v%d, v%d' % (Y, X))
    a('s_nop 1')
    a('v_permlane32_swap_b32 v%d, v%d' % (X, Y))
    VM = V_S + 3
    a('v_max_f32 v%d, v%d, v%d' % (VM, X, Y))
    PP, AA, AZ, VL = V_S + 4, V_S + 5, V_S + 6, V_S + 7
    a('v_sub_f32 v%d, v%d, v%d' % (PP, LG, VM))
    a('v_exp_f32 v%d, v%d' % (PP, PP))
    a('s_nop 0')
    a('v_mul_f32 v%d, v%d, v%d' % (AA, PP, V_VS))
    a('v_mul_f32 v%d, v%d, v%d' % (AZ, AA, V_VZ))
    a('s_nop 0')
    for n in (8, 4, 2, 1):
        dpp('v_add_f32_dpp', PP, PP, PP, 'row_ror:%d' % n)
        dpp('v_add_f32_dpp', AZ, AZ, AZ, 'row_ror:%d' % n)
        a('s_nop 0')
    for j in range(4):
        a('v_sub_f32 v%d, 0, v%d' % (V_O + j, AZ))
    a('v_mov_b32 v%d, v%d' % (VL, PP))
    a('s_nop 1')
    a('v_permlane32_swap_b32 v%d, v%d' % (PP, VL))
    a('v_add_f32 v%d, v%d, v%d' % (VL, VL, PP))
    for i in range(16):
        R = slot_reg(where[('v', i)])
        dpp('v_mov_b32_dpp', V_B, AA, None, 'row_newbcast:%d' % i)
        a.wait_vm_if('v%d' % i)
        for j in range(4):
            a('v_cvt_f32_i32 v%d, v%d' % (R + j, R + j))
        for j in range(4):
            a('v_fmac_f32 v%d, v%d, v%d' % (V_O + j, V_B, R + j))
    stamp(3)
    a('s_nop 1')
    a('v_permlane32_swap_b32 v%d, v%d' % (V_O, V_O + 2))
    a('v_permlane32_swap_b32 v%d, v%d' % (V_O + 1, V_O + 3))
    E = V_T + 3
    assert E % 4 == 0
    a('s_lshl_b32 s%d, s%d, 10' % (S_TMP, S_WAVE))
    a('v_add_f32 v%d, v%d, v%d' % (E, V_O, V_O + 2))
    a('v_add_f32 v%d, v%d, v%d' % (E + 1, V_O + 1, V_O + 3))
    a('v_mov_b32 v%d, v%d' % (E + 2, VL))
    a('v_mov_b32 v%d, v%d' % (E + 3, VM))
    a('v_add_u32 v%d, s%d, v%d' % (V_T, S_TMP, V_O16))
    a('ds_write_b128 v%d, %s' % (V_T, v(E, 4)))
    a('s_waitcnt lgkmcnt(0)')
    a('s_barrier')
    a('s_cmp_lg_u32 s%d, 0' % S_WAVE)
    a('s_cbranch_scc1 L_end')
    stamp(4)
    if stamps: a('s_waitcnt lgkmcnt(0)')
    LM = V_S
    R = lambda i: V_SLOT + 2 * i
    def combine():
        F, M_ = V_S + 2, E + 3
        dpp('v_max_f32_dpp', M_, LM + 1, LM + 1, 'row_ror:8')
        for n in (4, 2, 1):
            a('s_nop 1')
            dpp('v_max_f32_dpp', M_, M_, M_, 'row_ror:%d' % n)
        a('v_sub_f32 v%d, v%d, v%d' % (F, LM + 1, M_))
        a('v_exp_f32 v%d, v%d' % (F, F))
        a('s_nop 0')
        a('v_mul_f32 v%d, v%d, v%d' % (E + 2, LM, F))
        a('v_mov_b32 v%d, 0' % E)
        a('v_mov_b32 v%d, 0' % (E + 1))
    def combine2(waitfn):
        F = V_S + 2
        k = 0
        for i in range(16):
            waitfn(i)
            dpp('v_fmac_f32_dpp', E, F, R(i), 'row_newbcast:%d' % i)
            dpp('v_fmac_f32_dpp', E + 1, F, R(i) + 1, 'row_newbcast:%d' % i)
            if i in (0, 2, 4, 6):
                dpp('v_add_f32_dpp', E + 2, E + 2, E + 2, 'row_ror:%d' % (8 >> (i // 2)))
    a('v_and_b32 v%d, 15, v0' % V_T)
    a('v_lshlrev_b32 v%d, 10, v%d' % (V_T, V_T))
    a('ds_read_b64 %s, v%d offset:8' % (v(LM, 2), V_T))
    for w in range(16):
        a('ds_read_b64 %s, v%d offset:%d' % (v(R(w), 2), V_O16, 1024 * w))
    a('s_waitcnt lgkmcnt(15)')
    a('s_waitcnt lgkmcnt(15)')
    combine()
    combine2(lambda i: a('s_waitcnt lgkmcnt(%d)' % (15 - i)))
    a('s_lshl_b32 s%d, s%d, 10' % (S_TMP, S_RECOFF))
    a.vm = []
    a('s_nop 0')
    a.vmem('buffer_store_dwordx4 %s, v%d, %s, s%d offen sc1' % (v(E, 4), V_O16, srd('ws'), S_TMP), 'st')
    a.wait_vm_all()
    a('s_mov_b64 exec, 1')
    a('v_mov_b32 v%d, 1' % (V_T + 1))
    a('s_lshl_b32 s%d, s%d, 4' % (S_TMP, S_HEAD))
    a('buffer_atomic_add v%d, off, %s, s%d sc0 sc1' % (V_T + 1, srd('dbg'), S_TMP))
    a('s_waitcnt vmcnt(0)')
    a('v_readfirstlane_b32 s%d, v%d' % (S_TMP, V_T + 1))
    a('s_mov_b64 exec, -1')
    stamp(5)
    a('s_cmp_lg_u32 s%d, 15' % S_TMP)
    a('s_cbranch_scc1 L_notlast' if stamps else 's_cbranch_scc1 L_end')
    a('s_lshl_b32 s%d, s%d, 14' % (S_RECOFF, S_HEAD))
    a.vmem('buffer_load_dwordx2 %s, v%d, %s, s%d offen offset:8 sc1' % (v(LM, 2), V_T, srd('ws'), S_RECOFF), 'lm')
    for i in range(16):
        if i % 4 == 0: a('s_add_u32 s%d, s%d, %d' % (S_TMP, S_RECOFF, (i // 4) * 4096))
        a.vmem('buffer_load_dwordx2 %s, v%d, %s, s%d offen offset:%d sc1' % (
            v(R(i), 2), V_O16, srd('ws'), S_TMP, (i % 4) * 1024), 'r%d' % i)
    a.wait_vm('lm')
    combine()
    combine2(lambda i: a.wait_vm('r%d' % i))
    a('v_rcp_f32 v%d, v%d' % (E + 2, E + 2))
    a('v_and_b32 v%d, 31, v0' % V_T)
    a('v_lshlrev_b32 v%d, 3, v%d' % (V_T, V_T))
    a('v_lshrrev_b32 v%d, 5, v0' % (V_T + 1))
    a('v_lshl_add_u32 v%d, v%d, 2, v%d' % (V_T, V_T + 1, V_T))
    a('v_mul_f32 v%d, v%d, v%d' % (E, E, E + 2))
    a('v_mul_f32 v%d, v%d, v%d' % (E + 1, E + 1, E + 2))
    a('v_cvt_pk_bf16_f32 v%d, v%d, v%d' % (E, E, E + 1))
    a('buffer_store_dword v%d, v%d, %s, s%d offen' % (E, V_T, srd('out'), S_QOFF))
    if enc:
        a('s_waitcnt vmcnt(0)')
        a('s_memrealtime s[24:25]')
        a('s_waitcnt lgkmcnt(0)')
        a('s_sub_u32 s26, s24, s100')
        a('s_mul_i32 s26, s26, %d' % enc)
        a.label('L_spin')
        a('s_memrealtime s[28:29]')
        a('s_waitcnt lgkmcnt(0)')
        a('s_sub_u32 s27, s28, s24')
        a('s_cmp_lt_u32 s27, s26')
        a('s_cbranch_scc1 L_spin')
    if stamps:
        a('s_waitcnt vmcnt(0)')
        stamp(6)
        flush_stamps(6)
        a('s_endpgm')
        a.label('L_notlast')
        flush_stamps(5)
    a.label('L_end')
    a('s_endpgm')
    rh, rl, c2, sd = rope_tables(stride_tok)
    a.lines.append('.p2align 6')
    a.lines.append('.type rope_consts,@object')
    a.lines.append('rope_consts:')
    for tab in (rh, rl, c2, sd):
        for b in range(0, 64, 8):
            a.lines.append('    .long ' + ', '.join('0x%08x' % x for x in tab[b:b + 8]))
    a.lines.append('.size rope_consts, 1024')
    launch = '; @launch grid=(256,1,1) block=(1024,1,1) lds=16384'
    return wrap(a.text(), launch, NV, extra_desc='')

if __name__ == '__main__':
    kw = {}
    for arg in sys.argv[2:]:
        k, val = arg.split('=')
        kw[k] = int(val) if val.lstrip('-').isdigit() else val
    open(sys.argv[1], 'w').write(gen(**kw))
```

```python
import sys, math, struct
from asmlib import *
from consts import rope_tables, f2u

def make_order(order):
    if order == 'kv':
        return [('k', i) for i in range(16)] + [('v', i) for i in range(16)]
    if order.startswith('e'):
        n = int(order[1:])
        return [('k', i) for i in range(n)] + [('v', 0)] + [('k', i) for i in range(n, 16)] + [('v', i) for i in range(1, 16)]
    if order == 'x':
        n = 0
    else:
        n = int(order[1:])
    seq = [('k', i) for i in range(n)]
    for i in range(16):
        if i + n < 16: seq.append(('k', i + n))
        seq.append(('v', i))
    if n == 0:
        pass
    return seq

def gen(kv_flags='nt', order='h8', ns=22, first=4, kk=0, map=1, stamps=0, enc=0, vearly=0, wst=0):
    a = Asm()
    seq = make_order(order)
    if vearly:
        seq.remove(('v', 0)); seq.insert(vearly - 1, ('v', 0))
    assert len(seq) == 32
    S_WAVE = 3
    S_KOFF = 4
    S_SCOFF, S_QOFF, S_HEAD, S_TMP, S_T0 = 10, 11, 12, 13, 14
    S_TBL = 8
    SRD = dict(qk=44, qv=48, ks=52, kz=56, vs=60, vz=64, q=68, qcos=72, qsin=76, out=80, ws=84, dbg=88)
    karg = dict(q=16, qk=18, ks=20, kz=22, qv=24, vs=26, vz=28, qcos=30, qsin=32, out=38, dbg=40, ws=42)
    size = dict(qk=1 << 26, qv=1 << 26, ks=1 << 19, kz=1 << 19, vs=1 << 19, vz=1 << 19,
                q=4096, qcos=256, qsin=256, out=4096, ws=1 << 21, dbg=256)
    S_M1, S_M0, S_M16 = 16, 18, 20
    S_C, S_HI, S_RECOFF = 22, 23, 15
    S_SOFF = 92
    def srd(n): return s(SRD[n], 4)
    V_O16, V_OSC = 1, 2
    V_KZ, V_KS, V_VS, V_VZ, V_B = 3, 4, 5, 6, 7
    V_W = [8, 12]
    V_C2 = 16
    V_O = 20
    V_S = 24; V_TT = 32
    V_T = 33
    V_SLOT = 40
    NV = V_SLOT + 4 * ns
    assert NV <= 128
    stepb = 1024 << kk
    stride_tok = 2 << kk
    groups = sorted(set((i * stepb) // 4096 * 4096 for i in range(16)))
    soff_reg = {g: S_SOFF + n for n, g in enumerate(groups)} if len(groups) <= 8 else None
    def kv_addr(i):
        off = i * stepb
        g = off // 4096 * 4096
        if soff_reg is not None:
            return 's%d' % soff_reg[g], off - g
        a('s_add_u32 s%d, s%d, %d' % (S_TMP, S_KOFF, g))
        return 's%d' % S_TMP, off - g

    NST = 12
    def stamp(k):
        if stamps or (wst and k <= 3):
            r = 100 if k == 0 else 24 + 2 * (k - 1)
            a('s_memrealtime s[%d:%d]' % (r, r + 1))
    def flush_stamps(k_last):
        if not stamps: return
        a('s_waitcnt lgkmcnt(0)')
        a('s_mul_i32 s13, s2, %d' % (NST * 4))
        a('s_add_u32 s13, s13, 0x100000')
        a('s_mov_b64 exec, 1')
        a('s_getreg_b32 s8, hwreg(HW_REG_XCC_ID)')
        for k in range(NST):
            kk_ = min(k, k_last)
            r = 100 if kk_ == 0 else 24 + 2 * (kk_ - 1)
            if k == NST - 1: r = 8
            a('v_mov_b32 v%d, s%d' % (V_T + 6, r))
            a('buffer_store_dword v%d, off, %s, s13 offset:%d' % (V_T + 6, srd('ws'), 4 * k))
            a('s_nop 1')
        a('s_mov_b64 exec, -1')

    a('s_cmp_ge_u32 s2, 256')
    a('s_cbranch_scc1 L_end')
    stamp(0)
    if enc: a('s_memrealtime s[100:101]')
    a('s_load_dwordx16 s[16:31], s[0:1], 0')
    a('s_load_dwordx8 s[32:39], s[0:1], 64')
    a('s_load_dwordx4 s[40:43], s[0:1], 96')
    a('v_lshrrev_b32 v1, 6, v0')
    a('v_and_b32 v0, 63, v0')
    a('v_readfirstlane_b32 s%d, v1' % S_WAVE)
    a('v_lshlrev_b32 v%d, 4, v0' % V_O16)
    if map == 1:
        a('s_and_b32 s%d, s2, 7' % S_TMP)
        a('s_lshl_b32 s%d, s%d, 5' % (S_TMP, S_TMP))
        a('s_lshr_b32 s%d, s2, 3' % S_T0)
        a('s_add_u32 s%d, s%d, s%d' % (S_RECOFF, S_TMP, S_T0))
    else:
        a('s_mov_b32 s%d, s2' % S_RECOFF)
    a('s_lshr_b32 s%d, s%d, 4' % (S_HEAD, S_RECOFF))
    a('s_lshr_b32 s%d, s%d, %d' % (S_TMP, S_WAVE, kk))
    a('s_lshl_b32 s%d, s%d, %d' % (S_TMP, S_TMP, 4 + kk))
    a('s_and_b32 s%d, s%d, %d' % (S_T0, S_WAVE, (1 << kk) - 1))
    a('s_add_u32 s%d, s%d, s%d' % (S_TMP, S_TMP, S_T0))
    a('s_lshl_b32 s%d, s%d, 18' % (S_KOFF, S_RECOFF))
    a('s_lshl_b32 s%d, s%d, 10' % (S_T0, S_TMP))
    a('s_add_u32 s%d, s%d, s%d' % (S_KOFF, S_KOFF, S_T0))
    if soff_reg is not None:
        for g, r in soff_reg.items():
            a('s_add_u32 s%d, s%d, %d' % (r, S_KOFF, g))
    a('s_and_b32 s%d, s%d, 15' % (S_T0, S_RECOFF))
    a('s_lshl_b32 s%d, s%d, 9' % (S_T0, S_T0))
    a('s_lshl_b32 s%d, s%d, 1' % (S_TMP, S_TMP))
    a('s_add_u32 s%d, s%d, s%d' % (S_T0, S_T0, S_TMP))
    a('s_lshl_b32 s%d, s%d, 15' % (S_SCOFF, S_HEAD))
    a('s_lshl_b32 s%d, s%d, 2' % (S_TMP, S_T0))
    a('s_add_u32 s%d, s%d, s%d' % (S_SCOFF, S_SCOFF, S_TMP))
    a('s_lshl_b32 s%d, s%d, 8' % (S_QOFF, S_HEAD))
    for n in ('qk', 'qv'):
        a('s_mov_b32 s%d, 0x%x' % (SRD[n] + 2, size[n]))
        a('s_mov_b32 s%d, 0x00020000' % (SRD[n] + 3))
    a('v_and_b32 v%d, 15, v0' % V_T)
    a('v_lshlrev_b32 v%d, %d, v%d' % (V_T + 1, 3 + kk, V_T))
    a('v_lshrrev_b32 v%d, 4, v0' % (V_T + 2))
    a('v_lshl_add_u32 v%d, v%d, 1, v%d' % (V_OSC, V_T + 2, V_T + 1))
    VCO, VQA, VQB = V_T + 3, V_T + 4, V_T + 5
    a('v_lshlrev_b32 v%d, 4, v%d' % (VCO, V_T))
    a('v_lshlrev_b32 v%d, 3, v0' % VQA)
    a('v_and_b32 v%d, 0xff, v%d' % (VQA, VQA))
    a('v_xor_b32 v%d, 0x80, v%d' % (VQB, VQA))
    a('s_getpc_b64 s[%d:%d]' % (S_TBL, S_TBL + 1))
    a.label('L_pc')
    a('s_add_u32 s%d, s%d, rope_consts-L_pc' % (S_TBL, S_TBL))
    a('s_addc_u32 s%d, s%d, 0' % (S_TBL + 1, S_TBL + 1))
    a('s_waitcnt lgkmcnt(0)')
    def mksrd(n, full=True):
        a('s_mov_b64 s[%d:%d], s[%d:%d]' % (SRD[n], SRD[n] + 1, karg[n], karg[n] + 1))
        if full:
            a('s_mov_b32 s%d, 0x%x' % (SRD[n] + 2, size[n]))
            a('s_mov_b32 s%d, 0x00020000' % (SRD[n] + 3))
    mksrd('qk', False); mksrd('qv', False)
    free = list(range(ns))
    where = {}
    nxt = [0]
    def slot_reg(sl): return V_SLOT + 4 * sl
    def issue_next():
        if nxt[0] >= len(seq): return False
        kind, i = seq[nxt[0]]; nxt[0] += 1
        sl = free.pop(0)
        where[(kind, i)] = sl
        so, imm = kv_addr(i)
        a.vmem('buffer_load_dwordx4 %s, v%d, %s, %s offen offset:%d %s' % (
            v(slot_reg(sl), 4), V_O16, srd('qk' if kind == 'k' else 'qv'), so, imm, kv_flags), '%s%d' % (kind, i))
        return True
    late = [free.pop(), free.pop(), free.pop()]
    RH, RL, SD = slot_reg(late[0]), slot_reg(late[1]), slot_reg(late[2])
    for _ in range(first):
        issue_next()
    for n in ('q', 'qcos', 'qsin', 'kz', 'ks', 'vs', 'vz'):
        mksrd(n)
    QA, QB, CA, SA = V_S, V_S + 2, V_S + 4, V_S + 6
    a.vmem('buffer_load_dwordx2 %s, v%d, %s, s%d offen' % (v(QA, 2), VQA, srd('q'), S_QOFF), 'q')
    a.vmem('buffer_load_dwordx2 %s, v%d, %s, s%d offen' % (v(QB, 2), VQB, srd('q'), S_QOFF), 'q')
    a.vmem('buffer_load_dwordx2 %s, v%d, %s, 0 offen' % (v(CA, 2), VQA, srd('qcos')), 'q')
    a.vmem('buffer_load_dwordx2 %s, v%d, %s, 0 offen' % (v(SA, 2), VQA, srd('qsin')), 'q')
    a.vmem('global_load_dwordx4 %s, v%d, s[%d:%d]' % (v(RH, 4), VCO, S_TBL, S_TBL + 1), 'c')
    a.vmem('global_load_dwordx4 %s, v%d, s[%d:%d] offset:256' % (v(RL, 4), VCO, S_TBL, S_TBL + 1), 'c')
    a.vmem('global_load_dwordx4 %s, v%d, s[%d:%d] offset:512' % (v(V_C2, 4), VCO, S_TBL, S_TBL + 1), 'c')
    a.vmem('global_load_dwordx4 %s, v%d, s[%d:%d] offset:768' % (v(SD, 4), VCO, S_TBL, S_TBL + 1), 'c')
    a.vmem('buffer_load_ushort v%d, v%d, %s, s%d offen' % (V_KZ, V_OSC, srd('kz'), S_SCOFF), 'kz')
    a.vmem('buffer_load_ushort v%d, v%d, %s, s%d offen' % (V_KS, V_OSC, srd('ks'), S_SCOFF), 'sc')
    a.vmem('buffer_load_ushort v%d, v%d, %s, s%d offen' % (V_VS, V_OSC, srd('vs'), S_SCOFF), 'sc')
    a.vmem('buffer_load_ushort v%d, v%d, %s, s%d offen' % (V_VZ, V_OSC, srd('vz'), S_SCOFF), 'sc')
    while free:
        if not issue_next(): break
    for n in ('out', 'ws', 'dbg'):
        mksrd(n)
    for r, val in ((S_M1, 0xcccccccc), (S_M0, 0xaaaaaaaa), (S_M16, 0xffff0000)):
        a('s_mov_b32 s%d, 0x%x' % (r, val)); a('s_mov_b32 s%d, 0x%x' % (r + 1, val))
    a('s_mov_b32 s%d, 0x%08x' % (S_C, f2u((128.0 ** -0.5) * math.log2(math.e))))
    a('s_mov_b32 s%d, 0xffff0000' % S_HI)
    T0, T1, T2, T3, SM, SN, TF = V_T, V_T + 1, V_T + 2, V_T + 3, V_T + 4, V_T + 5, V_T + 6
    QRA, QRB = V_W[1], V_O
    a('v_and_b32 v%d, 16, v0' % SM)
    a('v_lshlrev_b32 v%d, 27, v%d' % (SN, SM))
    a('v_xor_b32 v%d, 0x80000000, v%d' % (SM, SN))
    a('v_lshrrev_b32 v%d, 5, v0' % TF)
    a('v_add_u32 v%d, s%d, v%d' % (TF, S_T0, TF))
    a('v_cvt_f32_u32 v%d, v%d' % (TF, TF))
    a.wait_vm('q')
    def unpack(dst, base, j):
        r = base + j // 2
        if j % 2 == 0: a('v_lshlrev_b32 v%d, 16, v%d' % (dst, r))
        else: a('v_and_b32 v%d, s%d, v%d' % (dst, S_HI, r))
    for j in range(4):
        unpack(T0, QA, j); unpack(T1, CA, j); unpack(T2, QB, j); unpack(T3, SA, j)
        a('v_mul_f32 v%d, v%d, v%d' % (T1, T0, T1))
        a('v_xor_b32 v%d, v%d, v%d' % (T2, SM, T2))
        a('v_mul_f32 v%d, v%d, v%d' % (T3, T2, T3))
        a('v_cvt_pk_bf16_f32 v%d, v%d, v%d' % (T1, T1, T3))
        a('v_lshlrev_b32 v%d, 16, v%d' % (T3, T1))
        a('v_and_b32 v%d, s%d, v%d' % (T1, S_HI, T1))
        a('v_add_f32 v%d, v%d, v%d' % (QRA + j, T1, T3))
    for j in (0, 2):
        a('v_cvt_pk_bf16_f32 v%d, v%d, v%d' % (T0, QRA + j, QRA + j + 1))
        a('v_lshlrev_b32 v%d, 16, v%d' % (QRA + j, T0))
        a('v_and_b32 v%d, s%d, v%d' % (QRA + j + 1, S_HI, T0))
    for j in range(4):
        a('v_mov_b32 v%d, v%d' % (QRB + j, QRA + j))
        a('v_mov_b32 v%d, v%d' % (V_S + j, QRA + j))
    a('s_nop 1')
    for j in range(4):
        a('v_permlane16_swap_b32 v%d, v%d' % (QRB + j, V_S + j))
    for j in range(4):
        a('v_cndmask_b32 v%d, v%d, v%d, s[%d:%d]' % (QRB + j, V_S + j, QRB + j, S_M16, S_M16 + 1))
    for j in range(4):
        a('v_xor_b32 v%d, v%d, v%d' % (QRB + j, SN, QRB + j))
    a.wait_vm('c')
    for j in range(4):
        a('v_mul_f32 v%d, v%d, v%d' % (RH + j, TF, RH + j))
    for j in range(4):
        a('v_fract_f32 v%d, v%d' % (RH + j, RH + j))
    for j in range(4):
        a('v_fmac_f32 v%d, v%d, v%d' % (RH + j, TF, RL + j))
    for j in range(4):
        a('v_sin_f32 v%d, v%d' % (RL + j, RH + j))
    for j in range(4):
        a('v_cos_f32 v%d, v%d' % (RH + j, RH + j))
    W0, W1 = V_W
    a('s_nop 0')
    for j in range(4):
        a('v_mul_f32 v%d, v%d, v%d' % (W0 + j, QRA + j, RH + j))
    for j in range(4):
        a('v_fmac_f32 v%d, v%d, v%d' % (W0 + j, QRB + j, RL + j))
    for j in range(4):
        a('v_mul_f32 v%d, v%d, v%d' % (V_S + j, QRB + j, RH + j))
    for j in range(4):
        a('v_fma_f32 v%d, -v%d, v%d, v%d' % (V_S + j, QRA + j, RL + j, V_S + j))
    for j in range(4):
        a('v_mul_f32 v%d, v%d, v%d' % (W1 + j, V_C2 + j, W0 + j))
    for j in range(4):
        a('v_mul_f32 v%d, v%d, v%d' % (V_S + j, SD + j, V_S + j))
    for j in range(4):
        a('v_fma_f32 v%d, v%d, 0.5, -v%d' % (W1 + j, W1 + j, V_S + j))
    for sl in late: free.append(sl)
    while free:
        if not issue_next(): break
    a.wait_vm_if('kz')
    a('v_lshlrev_b32 v%d, 16, v%d' % (V_KZ, V_KZ))
    def dpp(op, d, s0, s1, ctrl, bank=0xf):
        if s1 is None:
            a('%s v%d, v%d %s row_mask:0xf bank_mask:0x%x' % (op, d, s0, ctrl, bank))
        else:
            a('%s v%d, v%d, v%d %s row_mask:0xf bank_mask:0x%x' % (op, d, s0, s1, ctrl, bank))
    a('s_nop 1')
    for i in range(16):
        K = slot_reg(where[('k', i)])
        cur, prev = V_W[i & 1], V_W[(i + 1) & 1]
        dpp('v_mov_b32_dpp', V_B, V_KZ, None, 'row_newbcast:%d' % i)
        a.wait_vm_if('k%d' % i)
        if i == 0: stamp(1)
        for j in range(4):
            a('v_cvt_f32_i32 v%d, v%d' % (K + j, K + j))
        for j in range(4):
            a('v_sub_f32 v%d, v%d, v%d' % (K + j, K + j, V_B))
        D = V_S + i if i < 8 else V_TT
        a('v_mul_f32 v%d, v%d, v%d' % (D, K, cur))
        for j in range(1, 4):
            a('v_fmac_f32 v%d, v%d, v%d' % (D, K + j, cur + j))
        free.append(where[('k', i)])
        issue_next()
        if i < 15:
            for j in range(4):
                a('v_fma_f32 v%d, v%d, v%d, -v%d' % (prev + j, V_C2 + j, cur + j, prev + j))
        else:
            a('s_nop 1')
        if i >= 8:
            dpp('v_add_f32_dpp', V_S + i - 8, V_S + i - 8, V_S + i - 8, 'row_mirror', 0x3)
            dpp('v_add_f32_dpp', V_S + i - 8, V_TT, V_TT, 'row_mirror', 0xc)
    while free:
        if not issue_next(): break
    assert nxt[0] == len(seq)
    stamp(2)
    a('s_nop 1')
    for i in range(4):
        dpp('v_add_f32_dpp', V_S + i, V_S + i, V_S + i, 'row_half_mirror', 0x5)
    for i in range(4):
        dpp('v_add_f32_dpp', V_S + i, V_S + 4 + i, V_S + 4 + i, 'row_half_mirror', 0xa)
    for i in range(4):
        dpp('v_add_f32_dpp', V_S + 4 + i, V_S + i, V_S + i, 'quad_perm:[2,3,0,1]')
    a('v_cndmask_b32 v%d, v%d, v%d, s[%d:%d]' % (V_S, V_S + 4, V_S + 6, S_M1, S_M1 + 1))
    a('v_cndmask_b32 v%d, v%d, v%d, s[%d:%d]' % (V_S + 1, V_S + 5, V_S + 7, S_M1, S_M1 + 1))
    a.wait_vm_if('sc')
    a('v_lshlrev_b32 v%d, 16, v%d' % (V_KS, V_KS))
    dpp('v_add_f32_dpp', V_S + 2, V_S, V_S, 'quad_perm:[1,0,3,2]')
    dpp('v_add_f32_dpp', V_S + 3, V_S + 1, V_S + 1, 'quad_perm:[1,0,3,2]')
    a('v_lshlrev_b32 v%d, 16, v%d' % (V_VS, V_VS))
    a('v_cndmask_b32 v%d, v%d, v%d, s[%d:%d]' % (V_S, V_S + 2, V_S + 3, S_M0, S_M0 + 1))
    LG, X, Y = V_S, V_S + 1, V_S + 2
    a('v_mul_f32 v%d, v%d, v%d' % (LG, LG, V_KS))
    a('v_lshlrev_b32 v%d, 16, v%d' % (V_VZ, V_VZ))
    a('v_mov_b32 v%d, v%d' % (X, LG))
    a('s_nop 1')
    a('v_permlane16_swap_b32 v%d, v%d' % (LG, X))
    a('v_add_f32 v%d, v%d, v%d' % (LG, LG, X))
    a('v_mul_f32 v%d, s%d, v%d' % (LG, S_C, LG))
    a('s_nop 1')
    dpp('v_max_f32_dpp', X, LG, LG, 'row_ror:8')
    for n in (4, 2, 1):
        a('s_nop 1')
        dpp('v_max_f32_dpp', X, X, X, 'row_ror:%d' % n)
    a('v_mov_b32 v%d, v%d' % (Y, X))
    a('s_nop 1')
    a('v_permlane32_swap_b32 v%d, v%d' % (X, Y))
    VM = V_S + 3
    a('v_max_f32 v%d, v%d, v%d' % (VM, X, Y))
    PP, AA, AZ, VL = V_S + 4, V_S + 5, V_S + 6, V_S + 7
    a('v_sub_f32 v%d, v%d, v%d' % (PP, LG, VM))
    a('v_exp_f32 v%d, v%d' % (PP, PP))
    a('s_nop 0')
    a('v_mul_f32 v%d, v%d, v%d' % (AA, PP, V_VS))
    a('v_mul_f32 v%d, v%d, v%d' % (AZ, AA, V_VZ))
    a('s_nop 0')
    for n in (8, 4, 2, 1):
        dpp('v_add_f32_dpp', PP, PP, PP, 'row_ror:%d' % n)
        dpp('v_add_f32_dpp', AZ, AZ, AZ, 'row_ror:%d' % n)
        a('s_nop 0')
    for j in range(4):
        a('v_sub_f32 v%d, 0, v%d' % (V_O + j, AZ))
    a('v_mov_b32 v%d, v%d' % (VL, PP))
    a('s_nop 1')
    a('v_permlane32_swap_b32 v%d, v%d' % (PP, VL))
    a('v_add_f32 v%d, v%d, v%d' % (VL, VL, PP))
    for i in range(16):
        R = slot_reg(where[('v', i)])
        dpp('v_mov_b32_dpp', V_B, AA, None, 'row_newbcast:%d' % i)
        a.wait_vm_if('v%d' % i)
        for j in range(4):
            a('v_cvt_f32_i32 v%d, v%d' % (R + j, R + j))
        for j in range(4):
            a('v_fmac_f32 v%d, v%d, v%d' % (V_O + j, V_B, R + j))
    stamp(3)
    a('s_nop 1')
    a('v_permlane32_swap_b32 v%d, v%d' % (V_O, V_O + 2))
    a('v_permlane32_swap_b32 v%d, v%d' % (V_O + 1, V_O + 3))
    E = V_T + 3
    assert E % 4 == 0
    a('s_lshl_b32 s%d, s%d, 10' % (S_TMP, S_WAVE))
    a('v_add_f32 v%d, v%d, v%d' % (E, V_O, V_O + 2))
    a('v_add_f32 v%d, v%d, v%d' % (E + 1, V_O + 1, V_O + 3))
    a('v_mov_b32 v%d, v%d' % (E + 2, VL))
    a('v_mov_b32 v%d, v%d' % (E + 3, VM))
    a('v_add_u32 v%d, s%d, v%d' % (V_T, S_TMP, V_O16))
    a('ds_write_b128 v%d, %s' % (V_T, v(E, 4)))
    a('s_waitcnt lgkmcnt(0)')
    if wst:
        a('s_lshl_b32 s13, s2, 4')
        a('s_add_u32 s13, s13, s%d' % S_WAVE)
        a('s_lshl_b32 s13, s13, 4')
        a('s_add_u32 s13, s13, 0x100000')
        a('s_mov_b64 exec, 1')
        for k, r in enumerate((100, 24, 26, 28)):
            a('v_mov_b32 v%d, s%d' % (V_T + 1, r))
            a('buffer_store_dword v%d, off, %s, s13 offset:%d' % (V_T + 1, srd('ws'), 4 * k))
            a('s_nop 1')
        a('s_mov_b64 exec, -1')
    a('s_barrier')
    a('s_cmp_lg_u32 s%d, 0' % S_WAVE)
    a('s_cbranch_scc1 L_end')
    stamp(4)
    if stamps: a('s_waitcnt lgkmcnt(0)')
    LM = V_S
    R = lambda i: V_SLOT + 2 * i
    def combine():
        F, M_ = V_S + 2, E + 3
        dpp('v_max_f32_dpp', M_, LM + 1, LM + 1, 'row_ror:8')
        for n in (4, 2, 1):
            a('s_nop 1')
            dpp('v_max_f32_dpp', M_, M_, M_, 'row_ror:%d' % n)
        a('v_sub_f32 v%d, v%d, v%d' % (F, LM + 1, M_))
        a('v_exp_f32 v%d, v%d' % (F, F))
        a('s_nop 0')
        a('v_mul_f32 v%d, v%d, v%d' % (E + 2, LM, F))
        a('v_mov_b32 v%d, 0' % E)
        a('v_mov_b32 v%d, 0' % (E + 1))
    def combine2(waitfn):
        F = V_S + 2
        k = 0
        for i in range(16):
            waitfn(i)
            dpp('v_fmac_f32_dpp', E, F, R(i), 'row_newbcast:%d' % i)
            dpp('v_fmac_f32_dpp', E + 1, F, R(i) + 1, 'row_newbcast:%d' % i)
            if i in (0, 2, 4, 6):
                dpp('v_add_f32_dpp', E + 2, E + 2, E + 2, 'row_ror:%d' % (8 >> (i // 2)))
    a('v_and_b32 v%d, 15, v0' % V_T)
    a('v_lshlrev_b32 v%d, 10, v%d' % (V_T, V_T))
    a('ds_read_b64 %s, v%d offset:8' % (v(LM, 2), V_T))
    for w in range(16):
        a('ds_read_b64 %s, v%d offset:%d' % (v(R(w), 2), V_O16, 1024 * w))
    a('s_waitcnt lgkmcnt(15)')
    a('s_waitcnt lgkmcnt(15)')
    combine()
    combine2(lambda i: a('s_waitcnt lgkmcnt(%d)' % (15 - i)))
    stamp(5)
    a('s_lshl_b32 s%d, s%d, 10' % (S_TMP, S_RECOFF))
    a.vm = []
    a('s_nop 0')
    a.vmem('buffer_store_dwordx4 %s, v%d, %s, s%d offen sc1' % (v(E, 4), V_O16, srd('ws'), S_TMP), 'st')
    a.wait_vm_all()
    stamp(6)
    a('s_mov_b64 exec, 1')
    a('v_mov_b32 v%d, 1' % (V_T + 1))
    a('s_lshl_b32 s%d, s%d, 4' % (S_TMP, S_HEAD))
    a('buffer_atomic_add v%d, off, %s, s%d sc0 sc1' % (V_T + 1, srd('dbg'), S_TMP))
    a('s_waitcnt vmcnt(0)')
    a('v_readfirstlane_b32 s%d, v%d' % (S_TMP, V_T + 1))
    a('s_mov_b64 exec, -1')
    stamp(7)
    a('s_cmp_lg_u32 s%d, 15' % S_TMP)
    a('s_cbranch_scc1 L_notlast' if stamps else 's_cbranch_scc1 L_end')
    a('s_lshl_b32 s%d, s%d, 14' % (S_RECOFF, S_HEAD))
    a.vmem('buffer_load_dwordx2 %s, v%d, %s, s%d offen offset:8 sc1' % (v(LM, 2), V_T, srd('ws'), S_RECOFF), 'lm')
    for i in range(16):
        if i % 4 == 0: a('s_add_u32 s%d, s%d, %d' % (S_TMP, S_RECOFF, (i // 4) * 4096))
        a.vmem('buffer_load_dwordx2 %s, v%d, %s, s%d offen offset:%d sc1' % (
            v(R(i), 2), V_O16, srd('ws'), S_TMP, (i % 4) * 1024), 'r%d' % i)
    a.wait_vm('lm')
    stamp(8)
    combine()
    combine2(lambda i: a.wait_vm('r%d' % i))
    stamp(9)
    a('v_rcp_f32 v%d, v%d' % (E + 2, E + 2))
    a('v_and_b32 v%d, 31, v0' % V_T)
    a('v_lshlrev_b32 v%d, 3, v%d' % (V_T, V_T))
    a('v_lshrrev_b32 v%d, 5, v0' % (V_T + 1))
    a('v_lshl_add_u32 v%d, v%d, 2, v%d' % (V_T, V_T + 1, V_T))
    a('v_mul_f32 v%d, v%d, v%d' % (E, E, E + 2))
    a('v_mul_f32 v%d, v%d, v%d' % (E + 1, E + 1, E + 2))
    a('v_cvt_pk_bf16_f32 v%d, v%d, v%d' % (E, E, E + 1))
    a('buffer_store_dword v%d, v%d, %s, s%d offen' % (E, V_T, srd('out'), S_QOFF))
    if enc:
        a('s_waitcnt vmcnt(0)')
        a('s_memrealtime s[24:25]')
        a('s_waitcnt lgkmcnt(0)')
        a('s_sub_u32 s26, s24, s100')
        a('s_mul_i32 s26, s26, %d' % enc)
        a.label('L_spin')
        a('s_memrealtime s[28:29]')
        a('s_waitcnt lgkmcnt(0)')
        a('s_sub_u32 s27, s28, s24')
        a('s_cmp_lt_u32 s27, s26')
        a('s_cbranch_scc1 L_spin')
    if stamps:
        a('s_waitcnt vmcnt(0)')
        stamp(10)
        flush_stamps(10)
        a('s_endpgm')
        a.label('L_notlast')
        flush_stamps(7)
    a.label('L_end')
    a('s_endpgm')
    rh, rl, c2, sd = rope_tables(stride_tok)
    a.lines.append('.p2align 6')
    a.lines.append('.type rope_consts,@object')
    a.lines.append('rope_consts:')
    for tab in (rh, rl, c2, sd):
        for b in range(0, 64, 8):
            a.lines.append('    .long ' + ', '.join('0x%08x' % x for x in tab[b:b + 8]))
    a.lines.append('.size rope_consts, 1024')
    launch = '; @launch grid=(256,1,1) block=(1024,1,1) lds=16384'
    return wrap(a.text(), launch, NV, extra_desc='')

if __name__ == '__main__':
    kw = {}
    for arg in sys.argv[2:]:
        k, val = arg.split('=')
        kw[k] = int(val) if val.lstrip('-').isdigit() else val
    open(sys.argv[1], 'w').write(gen(**kw))
```

```python
import sys, math
from asmlib import *
from consts import rope_tables, f2u
from gen2 import make_order

def gen(kv_flags='nt', order='h8', ns=22, n0=12, stamps=0, enc=0, proto='ack', wst=0, zconst=0, touch=0):
    a = Asm()
    seq = make_order(order)
    kk = 2
    S_WAVE, S_KOFF = 3, 4
    S_SPEC = 5
    S_TBL = 8
    S_QOFF, S_HEAD, S_TMP, S_T0, S_REG, S_TMP2 = 10, 11, 12, 13, 15, 14
    SRD = dict(qk=44, qv=48, ks=52, kz=56, vs=60, vz=64, q=68, qcos=72, qsin=76, out=80, ws=84, dbg=88)
    karg = dict(q=16, qk=18, ks=20, kz=22, qv=24, vs=26, vz=28, qcos=30, qsin=32, out=38, dbg=40, ws=42)
    size = dict(qk=1 << 26, qv=1 << 26, ks=1 << 19, kz=1 << 19, vs=1 << 19, vz=1 << 19,
                q=4096, qcos=256, qsin=256, out=4096, ws=1 << 21, dbg=256)
    S_M1, S_M0, S_C = 16, 18, 22
    S_SC = 92
    def srd(n): return s(SRD[n], 4)
    V_O16 = 1
    V_KZ, V_KS, V_VS, V_VZ, V_B = 3, 4, 5, 6, 7
    V_W = [8, 12]; V_C2 = 16; V_O = 20
    V_S = 24; V_TT = 32
    V_T = 33
    V_SLOT = 40
    NV = V_SLOT + 4 * ns
    assert NV <= 128
    L_SC = 0
    L_QR = 8192
    L_CT = 8704
    L_FLAG = 9728
    L_REC = 10240
    LDS = L_REC + 16384
    stepb = 4096
    NST = 12
    def stamp(k):
        if stamps or (wst and k <= 3):
            r = 100 if k == 0 else 24 + 2 * (k - 1)
            a('s_memrealtime s[%d:%d]' % (r, r + 1))
    def flush_stamps(k_last):
        if not stamps: return
        a('s_waitcnt lgkmcnt(0)')
        a('s_mul_i32 s13, s2, %d' % (NST * 4))
        a('s_add_u32 s13, s13, 0x100000')
        a('s_mov_b64 exec, 1')
        a('s_getreg_b32 s8, hwreg(HW_REG_XCC_ID)')
        for k in range(NST):
            k2 = min(k, k_last)
            r = 100 if k2 == 0 else 24 + 2 * (k2 - 1)
            if k == NST - 1: r = 8
            a('v_mov_b32 v%d, s%d' % (V_T + 6, r))
            a('buffer_store_dword v%d, off, %s, s13 offset:%d' % (V_T + 6, srd('ws'), 4 * k))
            a('s_nop 1')
        a('s_mov_b64 exec, -1')
    def dpp(op, d, s0, s1, ctrl, bank=0xf):
        if s1 is None: a('%s v%d, v%d %s row_mask:0xf bank_mask:0x%x' % (op, d, s0, ctrl, bank))
        else: a('%s v%d, v%d, v%d %s row_mask:0xf bank_mask:0x%x' % (op, d, s0, s1, ctrl, bank))

    a('s_cmp_ge_u32 s2, 256')
    a('s_cbranch_scc1 L_end')
    stamp(0)
    if enc: a('s_memrealtime s[100:101]')
    a('s_load_dwordx16 s[16:31], s[0:1], 0')
    a('s_load_dwordx8 s[32:39], s[0:1], 64')
    a('s_load_dwordx4 s[40:43], s[0:1], 96')
    a('v_lshrrev_b32 v1, 6, v0')
    a('v_and_b32 v0, 63, v0')
    a('v_readfirstlane_b32 s%d, v1' % S_WAVE)
    a('v_lshlrev_b32 v%d, 4, v0' % V_O16)
    a('s_and_b32 s%d, s2, 7' % S_TMP)
    a('s_lshl_b32 s%d, s%d, 5' % (S_TMP, S_TMP))
    a('s_lshr_b32 s%d, s2, 3' % S_T0)
    a('s_add_u32 s%d, s%d, s%d' % (S_REG, S_TMP, S_T0))
    a('s_lshr_b32 s%d, s%d, 4' % (S_HEAD, S_REG))
    a('s_lshr_b32 s%d, s%d, 2' % (S_TMP, S_WAVE))
    a('s_lshl_b32 s%d, s%d, 6' % (S_TMP, S_TMP))
    a('s_and_b32 s%d, s%d, 3' % (S_T0, S_WAVE))
    a('s_add_u32 s%d, s%d, s%d' % (S_TMP2, S_TMP, S_T0))
    a('s_lshl_b32 s%d, s%d, 18' % (S_KOFF, S_REG))
    a('s_lshl_b32 s%d, s%d, 10' % (S_T0, S_TMP2))
    a('s_add_u32 s%d, s%d, s%d' % (S_KOFF, S_KOFF, S_T0))
    for n in ('qk', 'qv'):
        a('s_mov_b32 s%d, 0x%x' % (SRD[n] + 2, size[n]))
        a('s_mov_b32 s%d, 0x00020000' % (SRD[n] + 3))
    a('s_and_b32 s%d, s%d, 15' % (S_T0, S_REG))
    a('s_lshl_b32 s%d, s%d, 9' % (S_T0, S_T0))
    a('s_lshl_b32 s%d, s%d, 1' % (S_TMP2, S_TMP2))
    a('s_lshl_b32 s%d, s%d, 8' % (S_QOFF, S_HEAD))
    a('s_getpc_b64 s[%d:%d]' % (S_TBL, S_TBL + 1))
    a.label('L_pc')
    a('s_add_u32 s%d, s%d, rope_consts-L_pc' % (S_TBL, S_TBL))
    a('s_addc_u32 s%d, s%d, 0' % (S_TBL + 1, S_TBL + 1))
    a('s_waitcnt lgkmcnt(0)')
    def mksrd(n, full=True):
        a('s_mov_b64 s[%d:%d], s[%d:%d]' % (SRD[n], SRD[n] + 1, karg[n], karg[n] + 1))
        if full:
            a('s_mov_b32 s%d, 0x%x' % (SRD[n] + 2, size[n]))
            a('s_mov_b32 s%d, 0x00020000' % (SRD[n] + 3))
    mksrd('qk', False); mksrd('qv', False)
    free = list(range(ns))
    where = {}
    nxt = [0]
    def slot_reg(sl): return V_SLOT + 4 * sl
    def issue_next():
        if nxt[0] >= len(seq): return False
        kind, i = seq[nxt[0]]; nxt[0] += 1
        sl = free.pop(0)
        where[(kind, i)] = sl
        if i == 0:
            so = 's%d' % S_KOFF
        else:
            a('s_add_u32 s%d, s%d, %d' % (S_TMP, S_KOFF, i * stepb)); so = 's%d' % S_TMP
        a.vmem('buffer_load_dwordx4 %s, v%d, %s, %s offen %s' % (
            v(slot_reg(sl), 4), V_O16, srd('qk' if kind == 'k' else 'qv'), so, kv_flags), '%s%d' % (kind, i))
        return True
    late = [free.pop(), free.pop(), free.pop()]
    RH, RL, SD = slot_reg(late[0]), slot_reg(late[1]), slot_reg(late[2])
    assert n0 <= ns - 3
    a('s_cmp_ge_u32 s%d, 4' % S_WAVE)
    a('s_cbranch_scc1 L_bar1')
    if touch:
        mksrd('ws'); mksrd('dbg'); mksrd('out')
        a('s_cmp_lg_u32 s%d, %d' % (S_WAVE, touch - 1))
        a('s_cbranch_scc1 L_notouch')
        a('s_lshl_b32 s%d, s%d, 10' % (S_TMP, S_REG))
        a('buffer_load_dword v%d, off, %s, s%d' % (V_S + 4, srd('ws'), S_TMP))
        a('buffer_load_dword v%d, off, %s, 0' % (V_S + 5, srd('dbg')))
        a('buffer_load_dword v%d, off, %s, s%d' % (V_S + 6, srd('out'), S_QOFF))
        a.label('L_notouch')
    a('s_cmp_eq_u32 s%d, 0' % S_WAVE)
    a('s_cselect_b32 s%d, s%d, s%d' % (S_SC, karg['kz'], karg['ks']))
    a('s_cselect_b32 s%d, s%d, s%d' % (S_SC + 1, karg['kz'] + 1, karg['ks'] + 1))
    a('s_cmp_eq_u32 s%d, 2' % S_WAVE)
    a('s_cselect_b32 s%d, s%d, s%d' % (S_SC, karg['vs'], S_SC))
    a('s_cselect_b32 s%d, s%d, s%d' % (S_SC + 1, karg['vs'] + 1, S_SC + 1))
    a('s_cmp_eq_u32 s%d, 3' % S_WAVE)
    a('s_cselect_b32 s%d, s%d, s%d' % (S_SC, karg['vz'], S_SC))
    a('s_cselect_b32 s%d, s%d, s%d' % (S_SC + 1, karg['vz'] + 1, S_SC + 1))
    a('s_mov_b32 s%d, 0x%x' % (S_SC + 2, 1 << 19))
    a('s_mov_b32 s%d, 0x00020000' % (S_SC + 3))
    a('s_lshl_b32 s%d, s%d, 11' % (S_TMP, S_WAVE))
    a('s_mov_b32 m0, s%d' % S_TMP)
    a('s_lshl_b32 s%d, s%d, 11' % (S_TMP, S_REG))
    a.vmem('buffer_load_dwordx4 v%d, %s, s%d offen lds' % (V_O16, s(S_SC, 4), S_TMP), 'su')
    a.vmem('buffer_load_dwordx4 v%d, %s, s%d offen offset:1024 lds' % (V_O16, s(S_SC, 4), S_TMP), 'su')
    QA, QB, CA, SA = V_S, V_S + 1, V_S + 2, V_S + 3
    mksrd('q'); mksrd('qcos'); mksrd('qsin')
    a('s_lshl_b32 s%d, s%d, 6' % (S_TMP, S_WAVE))
    a('v_add_u32 v%d, s%d, v0' % (V_T, S_TMP))
    a('v_lshlrev_b32 v%d, 1, v%d' % (V_T + 1, V_T))
    a('v_xor_b32 v%d, 0x80, v%d' % (V_T + 2, V_T + 1))
    a.vmem('buffer_load_ushort v%d, v%d, %s, s%d offen' % (QA, V_T + 1, srd('q'), S_QOFF), 'su')
    a.vmem('buffer_load_ushort v%d, v%d, %s, s%d offen' % (QB, V_T + 2, srd('q'), S_QOFF), 'su')
    a.vmem('buffer_load_ushort v%d, v%d, %s, 0 offen' % (CA, V_T + 1, srd('qcos')), 'su')
    a.vmem('buffer_load_ushort v%d, v%d, %s, 0 offen' % (SA, V_T + 1, srd('qsin')), 'su')
    a.vmem('global_load_dwordx4 %s, v%d, s[%d:%d]' % (v(RH, 4), V_O16, S_TBL, S_TBL + 1), 'su')
    for _ in range(n0):
        issue_next()
    a.wait_vm('su')
    T0, T1, T2, T3 = V_T + 3, V_T + 4, V_T + 5, V_T + 6
    for r in (QA, QB, CA, SA):
        a('v_lshlrev_b32 v%d, 16, v%d' % (r, r))
    a('s_cmp_eq_u32 s%d, 0' % S_WAVE)
    a('s_cselect_b32 s%d, 0x80000000, 0' % S_TMP)
    a('v_mul_f32 v%d, v%d, v%d' % (T0, QA, CA))
    a('v_xor_b32 v%d, s%d, v%d' % (QB, S_TMP, QB))
    a('v_mul_f32 v%d, v%d, v%d' % (T1, QB, SA))
    a('v_cvt_pk_bf16_f32 v%d, v%d, v%d' % (T0, T0, T1))
    a('v_lshlrev_b32 v%d, 16, v%d' % (T1, T0))
    a('v_and_b32 v%d, 0xffff0000, v%d' % (T0, T0))
    a('v_add_f32 v%d, v%d, v%d' % (T0, T0, T1))
    a('v_cvt_pk_bf16_f32 v%d, v%d, v%d' % (T0, T0, T0))
    a('v_lshlrev_b32 v%d, 16, v%d' % (T0, T0))
    a('v_lshlrev_b32 v%d, 2, v%d' % (V_T, V_T))
    a('s_cmp_ge_u32 s%d, 2' % S_WAVE)
    a('s_cbranch_scc1 L_noq')
    a('ds_write_b32 v%d, v%d offset:%d' % (V_T, T0, L_QR))
    a.label('L_noq')
    a('s_cmp_lg_u32 s%d, 2' % S_WAVE)
    a('s_cbranch_scc1 L_noc')
    a('ds_write_b128 v%d, %s offset:%d' % (V_O16, v(RH, 4), L_CT))
    a.label('L_noc')
    a('s_waitcnt lgkmcnt(0)')
    a.label('L_bar1')
    a('s_barrier')
    for n in ('out', 'ws', 'dbg'):
        mksrd(n)
    for r, val in ((S_M1, 0xcccccccc), (S_M0, 0xaaaaaaaa)):
        a('s_mov_b32 s%d, 0x%x' % (r, val)); a('s_mov_b32 s%d, 0x%x' % (r + 1, val))
    a('s_mov_b32 s%d, 0x%08x' % (S_C, f2u((128.0 ** -0.5) * math.log2(math.e))))
    QRA, QRB = V_W[1], V_O
    a('v_and_b32 v%d, 31, v0' % V_T)
    a('v_lshlrev_b32 v%d, 4, v%d' % (V_T, V_T))
    a('v_xor_b32 v%d, 0x100, v%d' % (V_T + 1, V_T))
    a('v_and_b32 v%d, 15, v0' % (V_T + 2))
    a('v_lshlrev_b32 v%d, 4, v%d' % (V_T + 3, V_T + 2))
    a('ds_read_b128 %s, v%d offset:%d' % (v(QRA, 4), V_T, L_QR))
    a('ds_read_b128 %s, v%d offset:%d' % (v(QRB, 4), V_T + 1, L_QR))
    a('ds_read_b128 %s, v%d offset:%d' % (v(RH, 4), V_T + 3, L_CT))
    a('ds_read_b128 %s, v%d offset:%d' % (v(RL, 4), V_T + 3, L_CT + 256))
    a('ds_read_b128 %s, v%d offset:%d' % (v(V_C2, 4), V_T + 3, L_CT + 512))
    a('ds_read_b128 %s, v%d offset:%d' % (v(SD, 4), V_T + 3, L_CT + 768))
    a('v_lshlrev_b32 v%d, 5, v%d' % (V_T + 2, V_T + 2))
    a('v_lshrrev_b32 v%d, 4, v0' % (V_T + 4))
    a('v_lshl_add_u32 v%d, v%d, 1, v%d' % (V_T + 2, V_T + 4, V_T + 2))
    a('s_lshl_b32 s%d, s%d, 2' % (S_TMP, S_TMP2))
    a('v_add_u32 v%d, s%d, v%d' % (V_T + 2, S_TMP, V_T + 2))
    for k, r in enumerate((V_KZ, V_KS, V_VS, V_VZ)):
        a('ds_read_u16 v%d, v%d offset:%d' % (r, V_T + 2, L_SC + 2048 * k))
    SM, SN, TF = V_T + 4, V_T + 5, V_T + 6
    a('v_and_b32 v%d, 16, v0' % SM)
    a('v_lshlrev_b32 v%d, 27, v%d' % (SN, SM))
    a('v_lshrrev_b32 v%d, 5, v0' % TF)
    a('s_add_u32 s%d, s%d, s%d' % (S_TMP, S_T0, S_TMP2))
    a('v_add_u32 v%d, s%d, v%d' % (TF, S_TMP, TF))
    a('v_cvt_f32_u32 v%d, v%d' % (TF, TF))
    a('s_waitcnt lgkmcnt(0)')
    for j in range(4): a('v_xor_b32 v%d, v%d, v%d' % (QRB + j, SN, QRB + j))
    for r in (V_KZ, V_KS, V_VS, V_VZ): a('v_lshlrev_b32 v%d, 16, v%d' % (r, r))
    for j in range(4): a('v_mul_f32 v%d, v%d, v%d' % (RH + j, TF, RH + j))
    for j in range(4): a('v_fract_f32 v%d, v%d' % (RH + j, RH + j))
    for j in range(4): a('v_fmac_f32 v%d, v%d, v%d' % (RH + j, TF, RL + j))
    for j in range(4): a('v_sin_f32 v%d, v%d' % (RL + j, RH + j))
    for j in range(4): a('v_cos_f32 v%d, v%d' % (RH + j, RH + j))
    W0, W1 = V_W
    a('s_nop 0')
    for j in range(4): a('v_mul_f32 v%d, v%d, v%d' % (W0 + j, QRA + j, RH + j))
    for j in range(4): a('v_fmac_f32 v%d, v%d, v%d' % (W0 + j, QRB + j, RL + j))
    for j in range(4): a('v_mul_f32 v%d, v%d, v%d' % (V_S + j, QRB + j, RH + j))
    for j in range(4): a('v_fma_f32 v%d, -v%d, v%d, v%d' % (V_S + j, QRA + j, RL + j, V_S + j))
    for j in range(4): a('v_mul_f32 v%d, v%d, v%d' % (W1 + j, V_C2 + j, W0 + j))
    for j in range(4): a('v_mul_f32 v%d, v%d, v%d' % (V_S + j, SD + j, V_S + j))
    for j in range(4): a('v_fma_f32 v%d, v%d, 0.5, -v%d' % (W1 + j, W1 + j, V_S + j))
    a('s_cmp_lt_u32 s%d, 4' % S_WAVE)
    a('s_cbranch_scc1 L_issued')
    for kind, i in seq[:n0]:
        if i == 0:
            so = 's%d' % S_KOFF
        else:
            a('s_add_u32 s%d, s%d, %d' % (S_TMP, S_KOFF, i * stepb)); so = 's%d' % S_TMP
        a('buffer_load_dwordx4 %s, v%d, %s, %s offen %s' % (
            v(slot_reg(where[(kind, i)]), 4), V_O16, srd('qk' if kind == 'k' else 'qv'), so, kv_flags))
    a.label('L_issued')
    for sl in late: free.append(sl)
    while free:
        if not issue_next(): break
    for i in range(16):
        K = slot_reg(where[('k', i)])
        cur, prev = V_W[i & 1], V_W[(i + 1) & 1]
        dpp('v_mov_b32_dpp', V_B, V_KZ, None, 'row_newbcast:%d' % i)
        a.wait_vm_if('k%d' % i)
        if i == 0: stamp(1)
        for j in range(4): a('v_cvt_f32_i32 v%d, v%d' % (K + j, K + j))
        for j in range(4): a('v_sub_f32 v%d, v%d, v%d' % (K + j, K + j, V_B))
        D = V_S + i if i < 8 else V_TT
        a('v_mul_f32 v%d, v%d, v%d' % (D, K, cur))
        for j in range(1, 4): a('v_fmac_f32 v%d, v%d, v%d' % (D, K + j, cur + j))
        free.append(where[('k', i)])
        issue_next()
        if i < 15:
            for j in range(4):
                a('v_fma_f32 v%d, v%d, v%d, -v%d' % (prev + j, V_C2 + j, cur + j, prev + j))
        else:
            a('s_nop 1')
        if i >= 8:
            dpp('v_add_f32_dpp', V_S + i - 8, V_S + i - 8, V_S + i - 8, 'row_mirror', 0x3)
            dpp('v_add_f32_dpp', V_S + i - 8, V_TT, V_TT, 'row_mirror', 0xc)
    while free:
        if not issue_next(): break
    assert nxt[0] == len(seq)
    stamp(2)
    a('s_nop 1')
    for i in range(4): dpp('v_add_f32_dpp', V_S + i, V_S + i, V_S + i, 'row_half_mirror', 0x5)
    for i in range(4): dpp('v_add_f32_dpp', V_S + i, V_S + 4 + i, V_S + 4 + i, 'row_half_mirror', 0xa)
    for i in range(4): dpp('v_add_f32_dpp', V_S + 4 + i, V_S + i, V_S + i, 'quad_perm:[2,3,0,1]')
    a('v_cndmask_b32 v%d, v%d, v%d, s[%d:%d]' % (V_S, V_S + 4, V_S + 6, S_M1, S_M1 + 1))
    a('v_cndmask_b32 v%d, v%d, v%d, s[%d:%d]' % (V_S + 1, V_S + 5, V_S + 7, S_M1, S_M1 + 1))
    a('s_nop 0')
    dpp('v_add_f32_dpp', V_S + 2, V_S, V_S, 'quad_perm:[1,0,3,2]')
    dpp('v_add_f32_dpp', V_S + 3, V_S + 1, V_S + 1, 'quad_perm:[1,0,3,2]')
    a('v_cndmask_b32 v%d, v%d, v%d, s[%d:%d]' % (V_S, V_S + 2, V_S + 3, S_M0, S_M0 + 1))
    LG, X, Y = V_S, V_S + 1, V_S + 2
    a('v_mul_f32 v%d, v%d, v%d' % (LG, LG, V_KS))
    a('v_mov_b32 v%d, v%d' % (X, LG))
    a('s_nop 1')
    a('v_permlane16_swap_b32 v%d, v%d' % (LG, X))
    a('v_add_f32 v%d, v%d, v%d' % (LG, LG, X))
    a('v_mul_f32 v%d, s%d, v%d' % (LG, S_C, LG))
    a('s_nop 1')
    dpp('v_max_f32_dpp', X, LG, LG, 'row_ror:8')
    for n in (4, 2, 1):
        a('s_nop 1')
        dpp('v_max_f32_dpp', X, X, X, 'row_ror:%d' % n)
    a('v_mov_b32 v%d, v%d' % (Y, X))
    a('s_nop 1')
    a('v_permlane32_swap_b32 v%d, v%d' % (X, Y))
    VM = V_S + 3
    a('v_max_f32 v%d, v%d, v%d' % (VM, X, Y))
    PP, AA, AZ, VL = V_S + 4, V_S + 5, V_S + 6, V_S + 7
    a('v_sub_f32 v%d, v%d, v%d' % (PP, LG, VM))
    a('v_exp_f32 v%d, v%d' % (PP, PP))
    a('s_nop 0')
    a('v_mul_f32 v%d, v%d, v%d' % (AA, PP, V_VS))
    a('v_mul_f32 v%d, v%d, v%d' % (AZ, AA, V_VZ))
    a('s_nop 0')
    for n in (8, 4, 2, 1):
        dpp('v_add_f32_dpp', PP, PP, PP, 'row_ror:%d' % n)
        dpp('v_add_f32_dpp', AZ, AZ, AZ, 'row_ror:%d' % n)
        a('s_nop 0')
    for j in range(4): a('v_sub_f32 v%d, 0, v%d' % (V_O + j, AZ))
    a('v_mov_b32 v%d, v%d' % (VL, PP))
    a('s_nop 1')
    a('v_permlane32_swap_b32 v%d, v%d' % (PP, VL))
    a('v_add_f32 v%d, v%d, v%d' % (VL, VL, PP))
    for i in range(16):
        R = slot_reg(where[('v', i)])
        dpp('v_mov_b32_dpp', V_B, AA, None, 'row_newbcast:%d' % i)
        a.wait_vm_if('v%d' % i)
        for j in range(4): a('v_cvt_f32_i32 v%d, v%d' % (R + j, R + j))
        for j in range(4): a('v_fmac_f32 v%d, v%d, v%d' % (V_O + j, V_B, R + j))
    stamp(3)
    a('s_nop 1')
    a('v_permlane32_swap_b32 v%d, v%d' % (V_O, V_O + 2))
    a('v_permlane32_swap_b32 v%d, v%d' % (V_O + 1, V_O + 3))
    E = V_T + 3
    a('s_lshl_b32 s%d, s%d, 10' % (S_TMP, S_WAVE))
    a('v_add_f32 v%d, v%d, v%d' % (E, V_O, V_O + 2))
    a('v_add_f32 v%d, v%d, v%d' % (E + 1, V_O + 1, V_O + 3))
    a('v_mov_b32 v%d, v%d' % (E + 2, VL))
    a('v_mov_b32 v%d, v%d' % (E + 3, VM))
    a('v_add_u32 v%d, s%d, v%d' % (V_T, S_TMP, V_O16))
    a('ds_write_b128 v%d, %s offset:%d' % (V_T, v(E, 4), L_REC))
    a('s_waitcnt lgkmcnt(0)')
    if wst:
        a('s_lshl_b32 s13, s2, 4')
        a('s_add_u32 s13, s13, s%d' % S_WAVE)
        a('s_lshl_b32 s13, s13, 4')
        a('s_add_u32 s13, s13, 0x100000')
        a('s_mov_b64 exec, 1')
        for k, r in enumerate((100, 24, 26, 28)):
            a('v_mov_b32 v%d, s%d' % (V_T + 1, r))
            a('buffer_store_dword v%d, off, %s, s13 offset:%d' % (V_T + 1, srd('ws'), 4 * k))
            a('s_nop 1')
        a('s_mov_b64 exec, -1')
    if proto == 'tag':
        a('s_cmp_lg_u32 s%d, 1' % S_WAVE)
        a('s_cbranch_scc1 L_noclr')
        for j in range(4): a('v_mov_b32 v%d, -1' % (V_SLOT + j))
        a('s_lshl_b32 s%d, s%d, 10' % (S_TMP, S_REG))
        a('buffer_store_dwordx4 %s, v%d, %s, s%d offen sc1' % (v(V_SLOT, 4), V_O16, srd('ws'), S_TMP))
        a('s_waitcnt vmcnt(0)')
        a.label('L_noclr')
    if proto == 'spec':
        a('s_cmp_lg_u32 s%d, 1' % S_WAVE)
        a('s_cbranch_scc1 L_noclr')
        for j in range(4): a('v_mov_b32 v%d, -1' % (V_SLOT + j))
        a('s_lshl_b32 s%d, s%d, 10' % (S_TMP, S_REG))
        a('buffer_store_dwordx4 %s, v%d, %s, s%d offen sc1' % (v(V_SLOT, 4), V_O16, srd('ws'), S_TMP))
        a('s_waitcnt vmcnt(0)')
        a('s_mov_b64 exec, 1')
        a('v_mov_b32 v%d, 1' % V_B)
        a('s_lshl_b32 s%d, s%d, 4' % (S_TMP, S_HEAD))
        a('buffer_atomic_add v%d, off, %s, s%d offset:8 sc1' % (V_B, srd('dbg'), S_TMP))
        a('s_mov_b64 exec, -1')
        a.label('L_noclr')
        a('s_cmp_lg_u32 s%d, 8' % S_WAVE)
        a('s_cbranch_scc1 L_nochk')
        a('s_lshl_b32 s%d, s%d, 4' % (S_TMP, S_HEAD))
        a('buffer_load_dword v%d, off, %s, s%d offset:8 sc1' % (V_B, srd('dbg'), S_TMP))
        a('v_mov_b32 v%d, %d' % (V_T, L_FLAG))
        a('s_waitcnt vmcnt(0)')
        a('ds_write_b32 v%d, v%d' % (V_T, V_B))
        a('s_waitcnt lgkmcnt(0)')
        a.label('L_nochk')
    a('s_cmp_lg_u32 s%d, 0' % S_WAVE)
    a('s_cbranch_scc1 L_others')
    LM = V_S
    R = lambda i: V_SLOT + 2 * i
    V_C1K, V_O8, V_OUT = V_T, V_T + 1, V_T + 2
    a('v_and_b32 v%d, 15, v0' % V_C1K)
    a('v_lshlrev_b32 v%d, 10, v%d' % (V_C1K, V_C1K))
    a('v_lshlrev_b32 v%d, 3, v0' % V_O8)
    a('v_and_b32 v%d, 31, v0' % V_OUT)
    a('v_lshlrev_b32 v%d, 3, v%d' % (V_OUT, V_OUT))
    a('v_lshrrev_b32 v%d, 5, v0' % V_B)
    a('v_lshl_add_u32 v%d, v%d, 2, v%d' % (V_OUT, V_B, V_OUT))
    a('s_barrier')
    stamp(4)
    if stamps: a('s_waitcnt lgkmcnt(0)')
    def combine():
        F, M_ = V_S + 2, E + 3
        dpp('v_max_f32_dpp', M_, LM + 1, LM + 1, 'row_ror:8')
        for n in (4, 2, 1):
            a('s_nop 1')
            dpp('v_max_f32_dpp', M_, M_, M_, 'row_ror:%d' % n)
        a('v_sub_f32 v%d, v%d, v%d' % (F, LM + 1, M_))
        a('v_exp_f32 v%d, v%d' % (F, F))
        a('s_nop 0')
        a('v_mul_f32 v%d, v%d, v%d' % (E + 2, LM, F))
        a('v_mov_b32 v%d, 0' % E)
        a('v_mov_b32 v%d, 0' % (E + 1))
    def combine2(waitfn):
        F = V_S + 2
        for i in range(16):
            waitfn(i)
            dpp('v_fmac_f32_dpp', E, F, R(i), 'row_newbcast:%d' % i)
            dpp('v_fmac_f32_dpp', E + 1, F, R(i) + 1, 'row_newbcast:%d' % i)
            if i in (0, 2, 4, 6):
                dpp('v_add_f32_dpp', E + 2, E + 2, E + 2, 'row_ror:%d' % (8 >> (i // 2)))
    if proto == 'spec':
        a('v_mov_b32 v%d, %d' % (V_B, L_FLAG))
        a('ds_read_b32 v%d, v%d' % (V_B, V_B))
    a('ds_read_b64 %s, v%d offset:%d' % (v(LM, 2), V_C1K, L_REC + 8))
    for w in range(16):
        a('ds_read_b64 %s, v%d offset:%d' % (v(R(w), 2), V_O16, L_REC + 1024 * w))
    a('s_waitcnt lgkmcnt(15)')
    combine()
    combine2(lambda i: a('s_waitcnt lgkmcnt(%d)' % (15 - i)))
    if proto == 'spec':
        a('v_readfirstlane_b32 s%d, v%d' % (S_SPEC, V_B))
    stamp(5)
    def rec_loads(flags):
        a('buffer_load_dwordx2 %s, v%d, %s, s%d offen offset:8 %s' % (v(LM, 2), V_C1K, srd('ws'), S_REG, flags))
        for i in range(16):
            if i % 4 == 0: a('s_add_u32 s%d, s%d, %d' % (S_TMP, S_REG, (i // 4) * 4096))
            a('buffer_load_dwordx2 %s, v%d, %s, s%d offen offset:%d %s' % (v(R(i), 2), V_O16, srd('ws'), S_TMP, (i % 4) * 1024, flags))
    a('s_lshl_b32 s%d, s%d, 10' % (S_TMP, S_REG))
    a('buffer_store_dwordx4 %s, v%d, %s, s%d offen sc1' % (v(E, 4), V_O16, srd('ws'), S_TMP))
    a('s_mov_b64 exec, 1')
    if proto == 'ack':
        a('s_waitcnt vmcnt(0)')
    stamp(6)
    a('v_mov_b32 v%d, 1' % V_B)
    a('s_lshl_b32 s%d, s%d, 4' % (S_TMP, S_HEAD))
    a('buffer_atomic_add v%d, off, %s, s%d sc0 sc1' % (V_B, srd('dbg'), S_TMP))
    a('s_mov_b64 exec, -1')
    a('s_lshl_b32 s%d, s%d, 14' % (S_REG, S_HEAD))
    if proto in ('spec', 'tag'):
        if proto == 'spec':
            a('s_cmp_lg_u32 s%d, 16' % S_SPEC)
            a('s_cbranch_scc1 L_nospec')
            rec_loads('sc1')
            a('s_waitcnt vmcnt(0)')
            a('v_readfirstlane_b32 s%d, v%d' % (S_TMP2, V_B))
            stamp(7)
            a('s_nop 3')
            a('s_cmp_lg_u32 s%d, 15' % S_TMP2)
            a('s_cbranch_scc1 L_notlast' if stamps else 's_cbranch_scc1 L_end')
            a('s_movk_i32 s%d, 0x7fff' % S_SPEC)
            a('s_branch L_check')
            a.label('L_nospec')
        a('s_waitcnt vmcnt(0)')
        a('v_readfirstlane_b32 s%d, v%d' % (S_TMP2, V_B))
        if proto == 'tag': stamp(7)
        a('s_nop 3')
        a('s_cmp_lg_u32 s%d, 15' % S_TMP2)
        a('s_cbranch_scc1 L_notlast' if stamps else 's_cbranch_scc1 L_end')
        a('s_movk_i32 s%d, 0x7fff' % S_SPEC)
        a.label('L_reload')
        rec_loads('sc1')
        a('s_waitcnt vmcnt(0)')
        a.label('L_check')
        X0 = V_B
        a('v_max3_u32 v%d, v%d, v%d, v%d' % (X0, LM, LM + 1, R(0)))
        regs = [R(0) + 1] + [R(i) + k for i in range(1, 16) for k in range(2)]
        regs = regs
        while len(regs) >= 2:
            a('v_max3_u32 v%d, v%d, v%d, v%d' % (X0, X0, regs[0], regs[1])); regs = regs[2:]
        if regs: a('v_max_u32 v%d, v%d, v%d' % (X0, X0, regs[0]))
        a('v_cmp_eq_u32 vcc, -1, v%d' % X0)
        a('s_sub_u32 s%d, s%d, 1' % (S_SPEC, S_SPEC))
        a('s_cbranch_scc1 L_end')
        a('s_cbranch_vccnz L_reload')
        stamp(8)
        combine()
        combine2(lambda i: a('s_nop 0'))
    else:
        a('s_waitcnt vmcnt(0)')
        a('v_readfirstlane_b32 s%d, v%d' % (S_TMP2, V_B))
        stamp(7)
        a('s_nop 3')
        a('s_cmp_lg_u32 s%d, 15' % S_TMP2)
        a('s_cbranch_scc1 L_notlast' if stamps else 's_cbranch_scc1 L_end')
        rec_loads('sc1')
        a('s_waitcnt vmcnt(16)')
        stamp(8)
        combine()
        combine2(lambda i: a('s_waitcnt vmcnt(%d)' % (15 - i)))
    stamp(9)
    a('v_rcp_f32 v%d, v%d' % (E + 2, E + 2))
    a('s_nop 0')
    a('v_mul_f32 v%d, v%d, v%d' % (E, E, E + 2))
    a('v_mul_f32 v%d, v%d, v%d' % (E + 1, E + 1, E + 2))
    a('v_cvt_pk_bf16_f32 v%d, v%d, v%d' % (E, E, E + 1))
    a('buffer_store_dword v%d, v%d, %s, s%d offen' % (E, V_OUT, srd('out'), S_QOFF))
    if enc:
        a('s_waitcnt vmcnt(0)')
        a('s_memrealtime s[24:25]')
        a('s_waitcnt lgkmcnt(0)')
        a('s_sub_u32 s26, s24, s100')
        a('s_mul_i32 s26, s26, %d' % enc)
        a.label('L_spin')
        a('s_memrealtime s[28:29]')
        a('s_waitcnt lgkmcnt(0)')
        a('s_sub_u32 s27, s28, s24')
        a('s_cmp_lt_u32 s27, s26')
        a('s_cbranch_scc1 L_spin')
    if stamps:
        a('s_waitcnt vmcnt(0)')
        stamp(10)
        flush_stamps(10)
        a('s_endpgm')
        a.label('L_notlast')
        flush_stamps(7)
    a('s_endpgm')
    a.label('L_others')
    a('s_barrier')
    a.label('L_end')
    a('s_endpgm')
    rh, rl, c2, sd = rope_tables(8)
    a.lines.append('.p2align 6')
    a.lines.append('.type rope_consts,@object')
    a.lines.append('rope_consts:')
    for tab in (rh, rl, c2, sd):
        for b in range(0, 64, 8):
            a.lines.append('    .long ' + ', '.join('0x%08x' % x for x in tab[b:b + 8]))
    a.lines.append('.size rope_consts, 1024')
    launch = '; @launch grid=(256,1,1) block=(1024,1,1) lds=%d' % LDS
    return wrap(a.text(), launch, NV)

if __name__ == '__main__':
    kw = {}
    for arg in sys.argv[2:]:
        k, val = arg.split('=')
        kw[k] = int(val) if val.lstrip('-').isdigit() else val
    open(sys.argv[1], 'w').write(gen(**kw))
```

```python
import sys, math
from asmlib import *
from consts import rope_tables, f2u
from gen2 import make_order

def gen(kv_flags='nt', order='kv', orderb='', prog=0, ns=22, n0=12, stamps=0, enc=0, proto='ack', wst=0, zconst=0, touch=0, rot='', probe='', chk=4, ldloc=1, compact=0, outflags=''):
    a = Asm()
    if prog and not orderb: orderb = order
    assert not (prog and proto != 'ack')
    seq = make_order(order)
    kk = 2
    S_WAVE, S_KOFF = 3, 4
    S_SPEC = 5
    S_TBL = 8
    S_QOFF, S_HEAD, S_TMP, S_T0, S_REG, S_TMP2 = 10, 11, 12, 13, 15, 14
    SRD = dict(qk=44, qv=48, ks=52, kz=56, vs=60, vz=64, q=68, qcos=72, qsin=76, out=80, ws=84, dbg=88)
    karg = dict(q=16, qk=18, ks=20, kz=22, qv=24, vs=26, vz=28, qcos=30, qsin=32, out=38, dbg=40, ws=42)
    size = dict(qk=1 << 26, qv=1 << 26, ks=1 << 19, kz=1 << 19, vs=1 << 19, vz=1 << 19,
                q=4096, qcos=256, qsin=256, out=4096, ws=1 << 21, dbg=256)
    S_M1, S_M0, S_C = 16, 18, 22
    S_SC = 92
    def srd(n): return s(SRD[n], 4)
    V_O16 = 1
    V_KZ, V_KS, V_VS, V_VZ, V_B = 3, 4, 5, 6, 7
    V_W = [8, 12]; V_C2 = 16; V_O = 20
    V_S = 24; V_TT = 32
    V_T = 33
    V_SLOT = 40
    NV = V_SLOT + 4 * ns
    assert NV <= 128
    L_SC = 0
    L_QR = 8192
    L_CT = 8704
    L_FLAG = 9728
    L_REC = 10240
    LDS = L_REC + 16384
    stepb = 4096
    NST = 12
    def stamp(k):
        if stamps or (wst and k <= 3):
            r = 100 if k == 0 else 24 + 2 * (k - 1)
            a('s_memrealtime s[%d:%d]' % (r, r + 1))
    def flush_stamps(k_last):
        if not stamps: return
        a('s_waitcnt lgkmcnt(0)')
        a('s_mul_i32 s13, s2, %d' % (NST * 4))
        a('s_add_u32 s13, s13, 0x100000')
        a('s_mov_b64 exec, 1')
        a('s_getreg_b32 s8, hwreg(HW_REG_XCC_ID)')
        for k in range(NST):
            k2 = min(k, k_last)
            r = 100 if k2 == 0 else 24 + 2 * (k2 - 1)
            if k == NST - 1: r = 8
            a('v_mov_b32 v%d, s%d' % (V_T + 6, r))
            a('buffer_store_dword v%d, off, %s, s13 offset:%d' % (V_T + 6, srd('ws'), 4 * k))
            a('s_nop 1')
        a('s_mov_b64 exec, -1')
    def dpp(op, d, s0, s1, ctrl, bank=0xf):
        if s1 is None: a('%s v%d, v%d %s row_mask:0xf bank_mask:0x%x' % (op, d, s0, ctrl, bank))
        else: a('%s v%d, v%d, v%d %s row_mask:0xf bank_mask:0x%x' % (op, d, s0, s1, ctrl, bank))

    a('s_cmp_ge_u32 s2, 256')
    a('s_cbranch_scc1 L_end')
    stamp(0)
    if enc: a('s_memrealtime s[100:101]')
    a('s_load_dwordx16 s[16:31], s[0:1], 0')
    a('s_load_dwordx8 s[32:39], s[0:1], 64')
    a('s_load_dwordx4 s[40:43], s[0:1], 96')
    a('v_lshrrev_b32 v1, 6, v0')
    a('v_and_b32 v0, 63, v0')
    a('v_readfirstlane_b32 s%d, v1' % S_WAVE)
    a('v_lshlrev_b32 v%d, 4, v0' % V_O16)
    a('s_and_b32 s%d, s2, 7' % S_TMP)
    a('s_lshl_b32 s%d, s%d, 5' % (S_TMP, S_TMP))
    a('s_lshr_b32 s%d, s2, 3' % S_T0)
    a('s_add_u32 s%d, s%d, s%d' % (S_REG, S_TMP, S_T0))
    a('s_lshr_b32 s%d, s%d, 4' % (S_HEAD, S_REG))
    a('s_lshr_b32 s%d, s%d, 2' % (S_TMP, S_WAVE))
    if rot:
        if rot == 'x1':   a('s_and_b32 s%d, s2, 1' % S_T0); a('s_lshl_b32 s%d, s%d, 1' % (S_T0, S_T0))
        elif rot == 'x3': a('s_and_b32 s%d, s2, 3' % S_T0)
        elif rot == 's3': a('s_lshr_b32 s%d, s2, 3' % S_T0)
        elif rot == 'xs': a('s_lshr_b32 s%d, s2, 3' % S_T0); a('s_add_u32 s%d, s%d, s2' % (S_T0, S_T0))
        elif rot == 'x6': a('s_lshr_b32 s%d, s2, 1' % S_T0)
        a('s_add_u32 s%d, s%d, s%d' % (S_TMP, S_TMP, S_T0))
        a('s_and_b32 s%d, s%d, 3' % (S_TMP, S_TMP))
    a('s_lshl_b32 s%d, s%d, 6' % (S_TMP, S_TMP))
    a('s_and_b32 s%d, s%d, 3' % (S_T0, S_WAVE))
    a('s_add_u32 s%d, s%d, s%d' % (S_TMP2, S_TMP, S_T0))
    a('s_lshl_b32 s%d, s%d, 18' % (S_KOFF, S_REG))
    a('s_lshl_b32 s%d, s%d, 10' % (S_T0, S_TMP2))
    a('s_add_u32 s%d, s%d, s%d' % (S_KOFF, S_KOFF, S_T0))
    for n in ('qk', 'qv'):
        a('s_mov_b32 s%d, 0x%x' % (SRD[n] + 2, size[n]))
        a('s_mov_b32 s%d, 0x00020000' % (SRD[n] + 3))
    a('s_and_b32 s%d, s%d, 15' % (S_T0, S_REG))
    a('s_lshl_b32 s%d, s%d, 9' % (S_T0, S_T0))
    a('s_lshl_b32 s%d, s%d, 1' % (S_TMP2, S_TMP2))
    a('s_lshl_b32 s%d, s%d, 8' % (S_QOFF, S_HEAD))
    a('s_getpc_b64 s[%d:%d]' % (S_TBL, S_TBL + 1))
    a.label('L_pc')
    a('s_add_u32 s%d, s%d, rope_consts-L_pc' % (S_TBL, S_TBL))
    a('s_addc_u32 s%d, s%d, 0' % (S_TBL + 1, S_TBL + 1))
    a('s_waitcnt lgkmcnt(0)')
    def mksrd(n, full=True):
        a('s_mov_b64 s[%d:%d], s[%d:%d]' % (SRD[n], SRD[n] + 1, karg[n], karg[n] + 1))
        if full:
            a('s_mov_b32 s%d, 0x%x' % (SRD[n] + 2, size[n]))
            a('s_mov_b32 s%d, 0x00020000' % (SRD[n] + 3))
    mksrd('qk', False); mksrd('qv', False)
    free = list(range(ns))
    where = {}
    nxt = [0]
    def slot_reg(sl): return V_SLOT + 4 * sl
    def issue_next():
        if nxt[0] >= len(seq): return False
        kind, i = seq[nxt[0]]; nxt[0] += 1
        sl = free.pop(0)
        where[(kind, i)] = sl
        if i == 0:
            so = 's%d' % S_KOFF
        else:
            a('s_add_u32 s%d, s%d, %d' % (S_TMP, S_KOFF, i * stepb)); so = 's%d' % S_TMP
        a.vmem('buffer_load_dwordx4 %s, v%d, %s, %s offen %s' % (
            v(slot_reg(sl), 4), V_O16, srd('qk' if kind == 'k' else 'qv'), so, kv_flags), '%s%d' % (kind, i))
        return True
    late = [free.pop(), free.pop(), free.pop()]
    RH, RL, SD = slot_reg(late[0]), slot_reg(late[1]), slot_reg(late[2])
    assert n0 <= ns - 3
    a('s_cmp_ge_u32 s%d, 4' % S_WAVE)
    a('s_cbranch_scc1 L_bar1')
    if touch:
        mksrd('ws'); mksrd('dbg'); mksrd('out')
        a('s_cmp_lg_u32 s%d, %d' % (S_WAVE, touch - 1))
        a('s_cbranch_scc1 L_notouch')
        a('s_lshl_b32 s%d, s%d, 10' % (S_TMP, S_REG))
        a('buffer_load_dword v%d, off, %s, s%d' % (V_S + 4, srd('ws'), S_TMP))
        a('buffer_load_dword v%d, off, %s, 0' % (V_S + 5, srd('dbg')))
        a('buffer_load_dword v%d, off, %s, s%d' % (V_S + 6, srd('out'), S_QOFF))
        a.label('L_notouch')
    a('s_cmp_eq_u32 s%d, 0' % S_WAVE)
    a('s_cselect_b32 s%d, s%d, s%d' % (S_SC, karg['kz'], karg['ks']))
    a('s_cselect_b32 s%d, s%d, s%d' % (S_SC + 1, karg['kz'] + 1, karg['ks'] + 1))
    a('s_cmp_eq_u32 s%d, 2' % S_WAVE)
    a('s_cselect_b32 s%d, s%d, s%d' % (S_SC, karg['vs'], S_SC))
    a('s_cselect_b32 s%d, s%d, s%d' % (S_SC + 1, karg['vs'] + 1, S_SC + 1))
    a('s_cmp_eq_u32 s%d, 3' % S_WAVE)
    a('s_cselect_b32 s%d, s%d, s%d' % (S_SC, karg['vz'], S_SC))
    a('s_cselect_b32 s%d, s%d, s%d' % (S_SC + 1, karg['vz'] + 1, S_SC + 1))
    a('s_mov_b32 s%d, 0x%x' % (S_SC + 2, 1 << 19))
    a('s_mov_b32 s%d, 0x00020000' % (S_SC + 3))
    a('s_lshl_b32 s%d, s%d, 11' % (S_TMP, S_WAVE))
    a('s_mov_b32 m0, s%d' % S_TMP)
    a('s_lshl_b32 s%d, s%d, 11' % (S_TMP, S_REG))
    a.vmem('buffer_load_dwordx4 v%d, %s, s%d offen lds' % (V_O16, s(S_SC, 4), S_TMP), 'su')
    a.vmem('buffer_load_dwordx4 v%d, %s, s%d offen offset:1024 lds' % (V_O16, s(S_SC, 4), S_TMP), 'su')
    QA, QB, CA, SA = V_S, V_S + 1, V_S + 2, V_S + 3
    mksrd('q'); mksrd('qcos'); mksrd('qsin')
    a('s_lshl_b32 s%d, s%d, 6' % (S_TMP, S_WAVE))
    a('v_add_u32 v%d, s%d, v0' % (V_T, S_TMP))
    a('v_lshlrev_b32 v%d, 1, v%d' % (V_T + 1, V_T))
    a('v_xor_b32 v%d, 0x80, v%d' % (V_T + 2, V_T + 1))
    a.vmem('buffer_load_ushort v%d, v%d, %s, s%d offen' % (QA, V_T + 1, srd('q'), S_QOFF), 'su')
    a.vmem('buffer_load_ushort v%d, v%d, %s, s%d offen' % (QB, V_T + 2, srd('q'), S_QOFF), 'su')
    a.vmem('buffer_load_ushort v%d, v%d, %s, 0 offen' % (CA, V_T + 1, srd('qcos')), 'su')
    a.vmem('buffer_load_ushort v%d, v%d, %s, 0 offen' % (SA, V_T + 1, srd('qsin')), 'su')
    a.vmem('global_load_dwordx4 %s, v%d, s[%d:%d]' % (v(RH, 4), V_O16, S_TBL, S_TBL + 1), 'su')
    for _ in range(n0):
        issue_next()
    a.wait_vm('su')
    T0, T1, T2, T3 = V_T + 3, V_T + 4, V_T + 5, V_T + 6
    for r in (QA, QB, CA, SA):
        a('v_lshlrev_b32 v%d, 16, v%d' % (r, r))
    a('s_cmp_eq_u32 s%d, 0' % S_WAVE)
    a('s_cselect_b32 s%d, 0x80000000, 0' % S_TMP)
    a('v_mul_f32 v%d, v%d, v%d' % (T0, QA, CA))
    a('v_xor_b32 v%d, s%d, v%d' % (QB, S_TMP, QB))
    a('v_mul_f32 v%d, v%d, v%d' % (T1, QB, SA))
    a('v_cvt_pk_bf16_f32 v%d, v%d, v%d' % (T0, T0, T1))
    a('v_lshlrev_b32 v%d, 16, v%d' % (T1, T0))
    a('v_and_b32 v%d, 0xffff0000, v%d' % (T0, T0))
    a('v_add_f32 v%d, v%d, v%d' % (T0, T0, T1))
    a('v_cvt_pk_bf16_f32 v%d, v%d, v%d' % (T0, T0, T0))
    a('v_lshlrev_b32 v%d, 16, v%d' % (T0, T0))
    a('v_lshlrev_b32 v%d, 2, v%d' % (V_T, V_T))
    a('s_cmp_ge_u32 s%d, 2' % S_WAVE)
    a('s_cbranch_scc1 L_noq')
    a('ds_write_b32 v%d, v%d offset:%d' % (V_T, T0, L_QR))
    a.label('L_noq')
    a('s_cmp_lg_u32 s%d, 2' % S_WAVE)
    a('s_cbranch_scc1 L_noc')
    a('ds_write_b128 v%d, %s offset:%d' % (V_O16, v(RH, 4), L_CT))
    a.label('L_noc')
    a('s_waitcnt lgkmcnt(0)')
    a.label('L_bar1')
    a('s_barrier')
    for n in ('out', 'ws', 'dbg'):
        mksrd(n)
    for r, val in ((S_M1, 0xcccccccc), (S_M0, 0xaaaaaaaa)):
        a('s_mov_b32 s%d, 0x%x' % (r, val)); a('s_mov_b32 s%d, 0x%x' % (r + 1, val))
    a('s_mov_b32 s%d, 0x%08x' % (S_C, f2u((128.0 ** -0.5) * math.log2(math.e))))
    if proto == 'loc':
        a('s_cmp_lg_u32 s%d, 1' % S_WAVE)
        a('s_cbranch_scc1 L_nopub')
        a('s_getreg_b32 s%d, hwreg(HW_REG_XCC_ID, 0, 4)' % S_TMP)
        a('s_cmp_gt_u32 s%d, 7' % S_TMP)
        a('s_cbranch_scc1 L_nopub')
        a('s_mul_i32 s%d, s%d, 5' % (S_TMP, S_TMP))
        a('s_lshl_b64 s[96:97], 1, s%d' % S_TMP)
        a('s_mov_b64 exec, 1')
        a('v_mov_b32 v%d, s96' % V_S)
        a('v_mov_b32 v%d, s97' % (V_S + 1))
        a('s_lshl_b32 s%d, s%d, 4' % (S_TMP, S_HEAD))
        a('buffer_atomic_add_x2 %s, off, %s, s%d offset:8 sc1' % (v(V_S, 2), srd('dbg'), S_TMP))
        a('s_mov_b64 exec, -1')
        a.label('L_nopub')
    QRA, QRB = V_W[1], V_O
    a('v_and_b32 v%d, 31, v0' % V_T)
    a('v_lshlrev_b32 v%d, 4, v%d' % (V_T, V_T))
    a('v_xor_b32 v%d, 0x100, v%d' % (V_T + 1, V_T))
    a('v_and_b32 v%d, 15, v0' % (V_T + 2))
    a('v_lshlrev_b32 v%d, 4, v%d' % (V_T + 3, V_T + 2))
    a('ds_read_b128 %s, v%d offset:%d' % (v(QRA, 4), V_T, L_QR))
    a('ds_read_b128 %s, v%d offset:%d' % (v(QRB, 4), V_T + 1, L_QR))
    a('ds_read_b128 %s, v%d offset:%d' % (v(RH, 4), V_T + 3, L_CT))
    a('ds_read_b128 %s, v%d offset:%d' % (v(RL, 4), V_T + 3, L_CT + 256))
    a('ds_read_b128 %s, v%d offset:%d' % (v(V_C2, 4), V_T + 3, L_CT + 512))
    a('ds_read_b128 %s, v%d offset:%d' % (v(SD, 4), V_T + 3, L_CT + 768))
    a('v_lshlrev_b32 v%d, 5, v%d' % (V_T + 2, V_T + 2))
    a('v_lshrrev_b32 v%d, 4, v0' % (V_T + 4))
    a('v_lshl_add_u32 v%d, v%d, 1, v%d' % (V_T + 2, V_T + 4, V_T + 2))
    a('s_lshl_b32 s%d, s%d, 2' % (S_TMP, S_TMP2))
    a('v_add_u32 v%d, s%d, v%d' % (V_T + 2, S_TMP, V_T + 2))
    for k, r in enumerate((V_KZ, V_KS, V_VS, V_VZ)):
        a('ds_read_u16 v%d, v%d offset:%d' % (r, V_T + 2, L_SC + 2048 * k))
    SM, SN, TF = V_T + 4, V_T + 5, V_T + 6
    a('v_and_b32 v%d, 16, v0' % SM)
    a('v_lshlrev_b32 v%d, 27, v%d' % (SN, SM))
    a('v_lshrrev_b32 v%d, 5, v0' % TF)
    a('s_add_u32 s%d, s%d, s%d' % (S_TMP, S_T0, S_TMP2))
    a('v_add_u32 v%d, s%d, v%d' % (TF, S_TMP, TF))
    a('v_cvt_f32_u32 v%d, v%d' % (TF, TF))
    a('s_waitcnt lgkmcnt(0)')
    for j in range(4): a('v_xor_b32 v%d, v%d, v%d' % (QRB + j, SN, QRB + j))
    for r in (V_KZ, V_KS, V_VS, V_VZ): a('v_lshlrev_b32 v%d, 16, v%d' % (r, r))
    for j in range(4): a('v_mul_f32 v%d, v%d, v%d' % (RH + j, TF, RH + j))
    for j in range(4): a('v_fract_f32 v%d, v%d' % (RH + j, RH + j))
    for j in range(4): a('v_fmac_f32 v%d, v%d, v%d' % (RH + j, TF, RL + j))
    for j in range(4): a('v_sin_f32 v%d, v%d' % (RL + j, RH + j))
    for j in range(4): a('v_cos_f32 v%d, v%d' % (RH + j, RH + j))
    W0, W1 = V_W
    a('s_nop 0')
    for j in range(4): a('v_mul_f32 v%d, v%d, v%d' % (W0 + j, QRA + j, RH + j))
    for j in range(4): a('v_fmac_f32 v%d, v%d, v%d' % (W0 + j, QRB + j, RL + j))
    for j in range(4): a('v_mul_f32 v%d, v%d, v%d' % (V_S + j, QRB + j, RH + j))
    for j in range(4): a('v_fma_f32 v%d, -v%d, v%d, v%d' % (V_S + j, QRA + j, RL + j, V_S + j))
    for j in range(4): a('v_mul_f32 v%d, v%d, v%d' % (W1 + j, V_C2 + j, W0 + j))
    for j in range(4): a('v_mul_f32 v%d, v%d, v%d' % (V_S + j, SD + j, V_S + j))
    for j in range(4): a('v_fma_f32 v%d, v%d, 0.5, -v%d' % (W1 + j, W1 + j, V_S + j))
    def main_body(tag, seq_, pre_issued):
        nonlocal seq, free, where
        if not pre_issued:
            seq = seq_; free = list(range(ns)); where = {}; nxt[0] = 0; a.vm = []
            while free:
                if not issue_next(): break
        else:
            a('s_cmp_lt_u32 s%d, 4' % S_WAVE)
            a('s_cbranch_scc1 L_issued')
            for kind, i in seq[:n0]:
                if i == 0:
                    so = 's%d' % S_KOFF
                else:
                    a('s_add_u32 s%d, s%d, %d' % (S_TMP, S_KOFF, i * stepb)); so = 's%d' % S_TMP
                a('buffer_load_dwordx4 %s, v%d, %s, %s offen %s' % (
                    v(slot_reg(where[(kind, i)]), 4), V_O16, srd('qk' if kind == 'k' else 'qv'), so, kv_flags))
            a.label('L_issued')
            for sl in late: free.append(sl)
            while free:
                if not issue_next(): break
        if prog and not pre_issued:
            a('s_barrier')
        for i in range(16):
            K = slot_reg(where[('k', i)])
            cur, prev = V_W[i & 1], V_W[(i + 1) & 1]
            dpp('v_mov_b32_dpp', V_B, V_KZ, None, 'row_newbcast:%d' % i)
            if i >= 8:
                dpp('v_add_f32_dpp', V_S + i - 8, V_S + i - 8, V_S + i - 8, 'row_mirror', 0x3)
            a.wait_vm_if('k%d' % i)
            if i == 0: stamp(1)
            for j in range(4): a('v_cvt_f32_i32 v%d, v%d' % (K + j, K + j))
            for j in range(4): a('v_sub_f32 v%d, v%d, v%d' % (K + j, K + j, V_B))
            D = V_S + i if i < 8 else V_TT
            a('v_mul_f32 v%d, v%d, v%d' % (D, K, cur))
            for j in range(1, 4): a('v_fmac_f32 v%d, v%d, v%d' % (D, K + j, cur + j))
            free.append(where[('k', i)])
            issue_next()
            if i < 15:
                for j in range(4):
                    a('v_fma_f32 v%d, v%d, v%d, -v%d' % (prev + j, V_C2 + j, cur + j, prev + j))
            else:
                a('s_nop 1')
            if i >= 8:
                dpp('v_add_f32_dpp', V_S + i - 8, V_TT, V_TT, 'row_mirror', 0xc)
        while free:
            if not issue_next(): break
        assert nxt[0] == len(seq)
        stamp(2)
        a('s_nop 1')
        for i in range(4): dpp('v_add_f32_dpp', V_S + i, V_S + i, V_S + i, 'row_half_mirror', 0x5)
        for i in range(4): dpp('v_add_f32_dpp', V_S + i, V_S + 4 + i, V_S + 4 + i, 'row_half_mirror', 0xa)
        for i in range(4): dpp('v_add_f32_dpp', V_S + 4 + i, V_S + i, V_S + i, 'quad_perm:[2,3,0,1]')
        a('v_cndmask_b32 v%d, v%d, v%d, s[%d:%d]' % (V_S, V_S + 4, V_S + 6, S_M1, S_M1 + 1))
        a('v_cndmask_b32 v%d, v%d, v%d, s[%d:%d]' % (V_S + 1, V_S + 5, V_S + 7, S_M1, S_M1 + 1))
        a('s_nop 0')
        dpp('v_add_f32_dpp', V_S + 2, V_S, V_S, 'quad_perm:[1,0,3,2]')
        dpp('v_add_f32_dpp', V_S + 3, V_S + 1, V_S + 1, 'quad_perm:[1,0,3,2]')
        a('v_cndmask_b32 v%d, v%d, v%d, s[%d:%d]' % (V_S, V_S + 2, V_S + 3, S_M0, S_M0 + 1))
        LG, X, Y = V_S, V_S + 1, V_S + 2
        a('v_mul_f32 v%d, v%d, v%d' % (LG, LG, V_KS))
        a('v_mov_b32 v%d, v%d' % (X, LG))
        a('s_nop 1')
        a('v_permlane16_swap_b32 v%d, v%d' % (LG, X))
        a('v_add_f32 v%d, v%d, v%d' % (LG, LG, X))
        a('v_mul_f32 v%d, s%d, v%d' % (LG, S_C, LG))
        a('s_nop 1')
        dpp('v_max_f32_dpp', X, LG, LG, 'row_ror:8')
        for n in (4, 2, 1):
            a('s_nop 1')
            dpp('v_max_f32_dpp', X, X, X, 'row_ror:%d' % n)
        a('v_mov_b32 v%d, v%d' % (Y, X))
        a('s_nop 1')
        a('v_permlane32_swap_b32 v%d, v%d' % (X, Y))
        VM = V_S + 3
        a('v_max_f32 v%d, v%d, v%d' % (VM, X, Y))
        PP, AA, AZ, VL = V_S + 4, V_S + 5, V_S + 6, V_S + 7
        a('v_sub_f32 v%d, v%d, v%d' % (PP, LG, VM))
        a('v_exp_f32 v%d, v%d' % (PP, PP))
        a('s_nop 0')
        a('v_mul_f32 v%d, v%d, v%d' % (AA, PP, V_VS))
        a('v_mul_f32 v%d, v%d, v%d' % (AZ, AA, V_VZ))
        a('s_nop 0')
        for n in (8, 4, 2, 1):
            dpp('v_add_f32_dpp', PP, PP, PP, 'row_ror:%d' % n)
            dpp('v_add_f32_dpp', AZ, AZ, AZ, 'row_ror:%d' % n)
            a('s_nop 0')
        for j in range(4): a('v_sub_f32 v%d, 0, v%d' % (V_O + j, AZ))
        a('v_mov_b32 v%d, v%d' % (VL, PP))
        a('s_nop 1')
        a('v_permlane32_swap_b32 v%d, v%d' % (PP, VL))
        a('v_add_f32 v%d, v%d, v%d' % (VL, VL, PP))
        for i in range(16):
            R = slot_reg(where[('v', i)])
            dpp('v_mov_b32_dpp', V_B, AA, None, 'row_newbcast:%d' % i)
            a.wait_vm_if('v%d' % i)
            for j in range(4): a('v_cvt_f32_i32 v%d, v%d' % (R + j, R + j))
            for j in range(4): a('v_fmac_f32 v%d, v%d, v%d' % (V_O + j, V_B, R + j))
        stamp(3)
    if orderb:
        a('s_cmp_ge_u32 s%d, 12' % S_WAVE)
        a('s_cbranch_scc1 L_bodyb')
    main_body('a', seq, True)
    VL, VM = V_S + 7, V_S + 3
    if orderb:
        a('s_branch L_rec')
        a.label('L_bodyb')
        main_body('b', make_order(orderb), False)
        a.label('L_rec')
    a('s_nop 1')
    a('v_permlane32_swap_b32 v%d, v%d' % (V_O, V_O + 2))
    a('v_permlane32_swap_b32 v%d, v%d' % (V_O + 1, V_O + 3))
    E = V_T + 3
    a('s_lshl_b32 s%d, s%d, 10' % (S_TMP, S_WAVE))
    a('v_add_f32 v%d, v%d, v%d' % (E, V_O, V_O + 2))
    a('v_add_f32 v%d, v%d, v%d' % (E + 1, V_O + 1, V_O + 3))
    a('v_mov_b32 v%d, v%d' % (E + 2, VL))
    a('v_mov_b32 v%d, v%d' % (E + 3, VM))
    a('v_add_u32 v%d, s%d, v%d' % (V_T, S_TMP, V_O16))
    a('ds_write_b128 v%d, %s offset:%d' % (V_T, v(E, 4), L_REC))
    a('s_waitcnt lgkmcnt(0)')
    if prog:
        a('s_cmp_ge_u32 s%d, 12' % S_WAVE)
        a('s_cbranch_scc1 L_nob15')
        a('s_barrier')
        a.label('L_nob15')
    if wst:
        a('s_lshl_b32 s13, s2, 4')
        a('s_add_u32 s13, s13, s%d' % S_WAVE)
        a('s_lshl_b32 s13, s13, 4')
        a('s_add_u32 s13, s13, 0x100000')
        a('s_mov_b64 exec, 1')
        for k, r in enumerate((100, 24, 26, 28)):
            a('v_mov_b32 v%d, s%d' % (V_T + 1, r))
            a('buffer_store_dword v%d, off, %s, s13 offset:%d' % (V_T + 1, srd('ws'), 4 * k))
            a('s_nop 1')
        a('s_mov_b64 exec, -1')
    if proto == 'loc':
        a('s_cmp_lg_u32 s%d, %d' % (S_WAVE, chk))
        a('s_cbranch_scc1 L_nochk')
        a('s_lshl_b32 s%d, s%d, 4' % (S_TMP, S_HEAD))
        a('buffer_load_dwordx2 %s, off, %s, s%d offset:8 sc1' % (v(V_SLOT, 2), srd('dbg'), S_TMP))
        a('s_getreg_b32 s%d, hwreg(HW_REG_XCC_ID, 0, 4)' % S_TMP2)
        a('s_min_u32 s%d, s%d, 8' % (S_TMP2, S_TMP2))
        a('s_mul_i32 s%d, s%d, 5' % (S_TMP2, S_TMP2))
        a('s_waitcnt vmcnt(0)')
        a('v_readfirstlane_b32 s96, v%d' % V_SLOT)
        a('v_readfirstlane_b32 s97, v%d' % (V_SLOT + 1))
        a('v_mov_b32 v%d, %d' % (V_T, L_FLAG))
        a('s_nop 2')
        a('s_lshr_b64 s[96:97], s[96:97], s%d' % S_TMP2)
        a('s_and_b32 s96, s96, 31')
        a('v_mov_b32 v%d, s96' % V_B)
        a('ds_write_b32 v%d, v%d' % (V_T, V_B))
        a('s_waitcnt lgkmcnt(0)')
        a.label('L_nochk')
    if probe:
        a('s_cmp_lg_u32 s%d, 1' % S_WAVE)
        a('s_cbranch_scc1 L_noprobe')
        for j in range(4): a('v_mov_b32 v%d, -1' % (V_SLOT + j))
        a('s_lshl_b32 s%d, s%d, 10' % (S_TMP, S_REG))
        a('s_add_u32 s%d, s%d, 0x80000' % (S_TMP, S_TMP))
        if probe == 'st1':  a('buffer_store_dwordx4 %s, v%d, %s, s%d offen sc1' % (v(V_SLOT, 4), V_O16, srd('ws'), S_TMP))
        if probe == 'st0':  a('buffer_store_dwordx4 %s, v%d, %s, s%d offen' % (v(V_SLOT, 4), V_O16, srd('ws'), S_TMP))
        if probe == 'stnt': a('buffer_store_dwordx4 %s, v%d, %s, s%d offen nt' % (v(V_SLOT, 4), V_O16, srd('ws'), S_TMP))
        if probe == 'ld1':  a('buffer_load_dwordx4 %s, v%d, %s, s%d offen sc1' % (v(V_SLOT, 4), V_O16, srd('ws'), S_TMP))
        if probe == 'at':
            a('s_mov_b64 exec, 1')
            a('s_lshl_b32 s%d, s%d, 4' % (S_TMP, S_HEAD))
            a('buffer_atomic_add v%d, off, %s, s%d offset:8 sc1' % (V_SLOT, srd('dbg'), S_TMP))
            a('s_mov_b64 exec, -1')
        a('s_waitcnt vmcnt(0)')
        a.label('L_noprobe')
    if proto == 'tag':
        a('s_cmp_lg_u32 s%d, 1' % S_WAVE)
        a('s_cbranch_scc1 L_noclr')
        for j in range(4): a('v_mov_b32 v%d, -1' % (V_SLOT + j))
        a('s_lshl_b32 s%d, s%d, 10' % (S_TMP, S_REG))
        a('buffer_store_dwordx4 %s, v%d, %s, s%d offen sc1' % (v(V_SLOT, 4), V_O16, srd('ws'), S_TMP))
        a('s_waitcnt vmcnt(0)')
        a.label('L_noclr')
    if proto == 'spec':
        a('s_cmp_lg_u32 s%d, 1' % S_WAVE)
        a('s_cbranch_scc1 L_noclr')
        for j in range(4): a('v_mov_b32 v%d, -1' % (V_SLOT + j))
        a('s_lshl_b32 s%d, s%d, 10' % (S_TMP, S_REG))
        a('buffer_store_dwordx4 %s, v%d, %s, s%d offen sc1' % (v(V_SLOT, 4), V_O16, srd('ws'), S_TMP))
        a('s_waitcnt vmcnt(0)')
        a('s_mov_b64 exec, 1')
        a('v_mov_b32 v%d, 1' % V_B)
        a('s_lshl_b32 s%d, s%d, 4' % (S_TMP, S_HEAD))
        a('buffer_atomic_add v%d, off, %s, s%d offset:8 sc1' % (V_B, srd('dbg'), S_TMP))
        a('s_mov_b64 exec, -1')
        a.label('L_noclr')
        a('s_cmp_lg_u32 s%d, 8' % S_WAVE)
        a('s_cbranch_scc1 L_nochk')
        a('s_lshl_b32 s%d, s%d, 4' % (S_TMP, S_HEAD))
        a('buffer_load_dword v%d, off, %s, s%d offset:8 sc1' % (V_B, srd('dbg'), S_TMP))
        a('v_mov_b32 v%d, %d' % (V_T, L_FLAG))
        a('s_waitcnt vmcnt(0)')
        a('ds_write_b32 v%d, v%d' % (V_T, V_B))
        a('s_waitcnt lgkmcnt(0)')
        a.label('L_nochk')
    a('s_cmp_lg_u32 s%d, 0' % S_WAVE)
    a('s_cbranch_scc1 L_others')
    LM = V_S
    R = lambda i: V_SLOT + 2 * i
    V_C1K, V_O8, V_OUT = V_T, V_T + 1, V_T + 2
    a('v_and_b32 v%d, 15, v0' % V_C1K)
    a('v_lshlrev_b32 v%d, 10, v%d' % (V_C1K, V_C1K))
    a('v_lshlrev_b32 v%d, 3, v0' % V_O8)
    a('v_and_b32 v%d, 31, v0' % V_OUT)
    a('v_lshlrev_b32 v%d, 3, v%d' % (V_OUT, V_OUT))
    a('v_lshrrev_b32 v%d, 5, v0' % V_B)
    a('v_lshl_add_u32 v%d, v%d, 2, v%d' % (V_OUT, V_B, V_OUT))
    def combine():
        F, M_ = V_S + 2, E + 3
        dpp('v_max_f32_dpp', M_, LM + 1, LM + 1, 'row_ror:8')
        for n in (4, 2, 1):
            a('s_nop 1')
            dpp('v_max_f32_dpp', M_, M_, M_, 'row_ror:%d' % n)
        a('v_sub_f32 v%d, v%d, v%d' % (F, LM + 1, M_))
        a('v_exp_f32 v%d, v%d' % (F, F))
        a('s_nop 0')
        a('v_mul_f32 v%d, v%d, v%d' % (E + 2, LM, F))
        a('v_mov_b32 v%d, 0' % E)
        a('v_mov_b32 v%d, 0' % (E + 1))
    def combine2(waitfn):
        F = V_S + 2
        for i in range(16):
            waitfn(i)
            dpp('v_fmac_f32_dpp', E, F, R(i), 'row_newbcast:%d' % i)
            dpp('v_fmac_f32_dpp', E + 1, F, R(i) + 1, 'row_newbcast:%d' % i)
            if i in (0, 2, 4, 6):
                dpp('v_add_f32_dpp', E + 2, E + 2, E + 2, 'row_ror:%d' % (8 >> (i // 2)))
    if prog:
        a('ds_read_b64 %s, v%d offset:%d' % (v(LM, 2), V_C1K, L_REC + 8))
        for w in range(12):
            a('ds_read_b64 %s, v%d offset:%d' % (v(R(w), 2), V_O16, L_REC + 1024 * w))
        a('s_mov_b32 s96, 0xf000f000'); a('s_mov_b32 s97, 0xf000f000')
        a('v_mov_b32 v%d, 0xff800000' % V_B)
        a('s_waitcnt lgkmcnt(12)')
        a('v_cndmask_b32 v%d, v%d, v%d, s[96:97]' % (LM + 1, LM + 1, V_B))
        a('v_mov_b32 v%d, 0' % V_B)
        a('v_cndmask_b32 v%d, v%d, v%d, s[96:97]' % (LM, LM, V_B))
        a('s_nop 0')
        combine()
        F = V_S + 2
        for i in range(12):
            a('s_waitcnt lgkmcnt(%d)' % (11 - i))
            dpp('v_fmac_f32_dpp', E, F, R(i), 'row_newbcast:%d' % i)
            dpp('v_fmac_f32_dpp', E + 1, F, R(i) + 1, 'row_newbcast:%d' % i)
            if i in (0, 2, 4, 6):
                dpp('v_add_f32_dpp', E + 2, E + 2, E + 2, 'row_ror:%d' % (8 >> (i // 2)))
        a('s_barrier')
        stamp(4)
        if stamps: a('s_waitcnt lgkmcnt(0)')
        Q = lambda w: V_SLOT + 4 * w
        for w in range(4):
            a('ds_read_b128 %s, v%d offset:%d' % (v(Q(w), 4), V_O16, L_REC + 1024 * (12 + w)))
        MX = V_S
        a('s_waitcnt lgkmcnt(2)')
        a('v_max3_f32 v%d, v%d, v%d, v%d' % (MX, E + 3, Q(0) + 3, Q(1) + 3))
        a('s_waitcnt lgkmcnt(0)')
        a('v_max3_f32 v%d, v%d, v%d, v%d' % (MX, MX, Q(2) + 3, Q(3) + 3))
        a('v_sub_f32 v%d, v%d, v%d' % (E + 3, E + 3, MX))
        for w in range(4): a('v_sub_f32 v%d, v%d, v%d' % (Q(w) + 3, Q(w) + 3, MX))
        a('v_exp_f32 v%d, v%d' % (E + 3, E + 3))
        for w in range(4): a('v_exp_f32 v%d, v%d' % (Q(w) + 3, Q(w) + 3))
        for j in range(3): a('v_mul_f32 v%d, v%d, v%d' % (E + j, E + j, E + 3))
        for w in range(4):
            for j in range(3): a('v_fmac_f32 v%d, v%d, v%d' % (E + j, Q(w) + j, Q(w) + 3))
        a('v_mov_b32 v%d, v%d' % (E + 3, MX))
    else:
        a('s_barrier')
        stamp(4)
        if stamps: a('s_waitcnt lgkmcnt(0)')
        if proto in ('spec', 'loc'):
            a('v_mov_b32 v%d, %d' % (V_B, L_FLAG))
            a('ds_read_b32 v%d, v%d' % (V_B, V_B))
        a('ds_read_b64 %s, v%d offset:%d' % (v(LM, 2), V_C1K, L_REC + 8))
        for w in range(16):
            a('ds_read_b64 %s, v%d offset:%d' % (v(R(w), 2), V_O16, L_REC + 1024 * w))
        a('s_waitcnt lgkmcnt(15)')
        combine()
        combine2(lambda i: a('s_waitcnt lgkmcnt(%d)' % (15 - i)))
    if proto in ('spec', 'loc'):
        a('v_readfirstlane_b32 s%d, v%d' % (S_SPEC, V_B))
    stamp(5)
    def rec_loads(flags):
        a('buffer_load_dwordx2 %s, v%d, %s, s%d offen offset:%d %s' % (v(LM, 2), V_C1K, srd('ws'), S_REG, 512 if compact else 8, flags))
        for i in range(16):
            if i % 4 == 0: a('s_add_u32 s%d, s%d, %d' % (S_TMP, S_REG, (i // 4) * 4096))
            a('buffer_load_dwordx2 %s, v%d, %s, s%d offen offset:%d %s' % (v(R(i), 2), V_O8 if compact else V_O16, srd('ws'), S_TMP, (i % 4) * 1024, flags))
    a('s_lshl_b32 s%d, s%d, 10' % (S_TMP, S_REG))
    if proto == 'loc':
        a('s_nop 1')
        a('s_cmp_eq_u32 s%d, 16' % S_SPEC)
        a('s_cbranch_scc1 L_stloc')
        a('buffer_store_dwordx4 %s, v%d, %s, s%d offen sc1' % (v(E, 4), V_O16, srd('ws'), S_TMP))
        a('s_branch L_stdone')
        a.label('L_stloc')
        a('buffer_store_dwordx4 %s, v%d, %s, s%d offen' % (v(E, 4), V_O16, srd('ws'), S_TMP))
        a.label('L_stdone')
    elif compact:
        a('buffer_store_dwordx2 %s, v%d, %s, s%d offen sc1' % (v(E, 2), V_O8, srd('ws'), S_TMP))
        a('s_mov_b64 exec, 0xffff')
        a('buffer_store_dwordx2 %s, v%d, %s, s%d offen offset:512 sc1' % (v(E + 2, 2), V_O8, srd('ws'), S_TMP))
    else:
        a('buffer_store_dwordx4 %s, v%d, %s, s%d offen sc1' % (v(E, 4), V_O16, srd('ws'), S_TMP))
    a('s_mov_b64 exec, 1')
    if proto in ('ack', 'loc'):
        a('s_waitcnt vmcnt(0)')
    stamp(6)
    a('v_mov_b32 v%d, 1' % V_B)
    a('s_lshl_b32 s%d, s%d, 4' % (S_TMP, S_HEAD))
    a('buffer_atomic_add v%d, off, %s, s%d sc0 sc1' % (V_B, srd('dbg'), S_TMP))
    a('s_mov_b64 exec, -1')
    a('s_lshl_b32 s%d, s%d, 14' % (S_REG, S_HEAD))
    if proto in ('spec', 'tag'):
        if proto == 'spec':
            a('s_cmp_lg_u32 s%d, 16' % S_SPEC)
            a('s_cbranch_scc1 L_nospec')
            rec_loads('sc1')
            a('s_waitcnt vmcnt(0)')
            a('v_readfirstlane_b32 s%d, v%d' % (S_TMP2, V_B))
            stamp(7)
            a('s_nop 3')
            a('s_cmp_lg_u32 s%d, 15' % S_TMP2)
            a('s_cbranch_scc1 L_notlast' if stamps else 's_cbranch_scc1 L_end')
            a('s_movk_i32 s%d, 0x7fff' % S_SPEC)
            a('s_branch L_check')
            a.label('L_nospec')
        a('s_waitcnt vmcnt(0)')
        a('v_readfirstlane_b32 s%d, v%d' % (S_TMP2, V_B))
        if proto == 'tag': stamp(7)
        a('s_nop 3')
        a('s_cmp_lg_u32 s%d, 15' % S_TMP2)
        a('s_cbranch_scc1 L_notlast' if stamps else 's_cbranch_scc1 L_end')
        a('s_movk_i32 s%d, 0x7fff' % S_SPEC)
        a.label('L_reload')
        rec_loads('sc1')
        a('s_waitcnt vmcnt(0)')
        a.label('L_check')
        X0 = V_B
        a('v_max3_u32 v%d, v%d, v%d, v%d' % (X0, LM, LM + 1, R(0)))
        regs = [R(0) + 1] + [R(i) + k for i in range(1, 16) for k in range(2)]
        regs = regs
        while len(regs) >= 2:
            a('v_max3_u32 v%d, v%d, v%d, v%d' % (X0, X0, regs[0], regs[1])); regs = regs[2:]
        if regs: a('v_max_u32 v%d, v%d, v%d' % (X0, X0, regs[0]))
        a('v_cmp_eq_u32 vcc, -1, v%d' % X0)
        a('s_sub_u32 s%d, s%d, 1' % (S_SPEC, S_SPEC))
        a('s_cbranch_scc1 L_end')
        a('s_cbranch_vccnz L_reload')
        stamp(8)
        combine()
        combine2(lambda i: a('s_nop 0'))
    else:
        a('s_waitcnt vmcnt(0)')
        a('v_readfirstlane_b32 s%d, v%d' % (S_TMP2, V_B))
        stamp(7)
        a('s_nop 3')
        a('s_cmp_lg_u32 s%d, 15' % S_TMP2)
        a('s_cbranch_scc1 L_notlast' if stamps else 's_cbranch_scc1 L_end')
        if proto == 'loc' and ldloc:
            a('s_cmp_eq_u32 s%d, 16' % S_SPEC)
            a('s_cbranch_scc1 L_ldloc')
            rec_loads('sc1')
            a('s_branch L_lddone')
            a.label('L_ldloc')
            rec_loads('')
            a.label('L_lddone')
        else:
            rec_loads('sc1')
        a('s_waitcnt vmcnt(16)')
        stamp(8)
        combine()
        combine2(lambda i: a('s_waitcnt vmcnt(%d)' % (15 - i)))
    stamp(9)
    a('v_rcp_f32 v%d, v%d' % (E + 2, E + 2))
    a('s_nop 0')
    a('v_mul_f32 v%d, v%d, v%d' % (E, E, E + 2))
    a('v_mul_f32 v%d, v%d, v%d' % (E + 1, E + 1, E + 2))
    a('v_cvt_pk_bf16_f32 v%d, v%d, v%d' % (E, E, E + 1))
    a('buffer_store_dword v%d, v%d, %s, s%d offen %s' % (E, V_OUT, srd('out'), S_QOFF, outflags))
    if enc:
        a('s_waitcnt vmcnt(0)')
        a('s_memrealtime s[24:25]')
        a('s_waitcnt lgkmcnt(0)')
        a('s_sub_u32 s26, s24, s100')
        a('s_mul_i32 s26, s26, %d' % enc)
        a.label('L_spin')
        a('s_memrealtime s[28:29]')
        a('s_waitcnt lgkmcnt(0)')
        a('s_sub_u32 s27, s28, s24')
        a('s_cmp_lt_u32 s27, s26')
        a('s_cbranch_scc1 L_spin')
    if stamps:
        a('s_waitcnt vmcnt(0)')
        stamp(10)
        flush_stamps(10)
        a('s_endpgm')
        a.label('L_notlast')
        flush_stamps(7)
    a('s_endpgm')
    a.label('L_others')
    a('s_barrier')
    a.label('L_end')
    a('s_endpgm')
    rh, rl, c2, sd = rope_tables(8)
    a.lines.append('.p2align 6')
    a.lines.append('.type rope_consts,@object')
    a.lines.append('rope_consts:')
    for tab in (rh, rl, c2, sd):
        for b in range(0, 64, 8):
            a.lines.append('    .long ' + ', '.join('0x%08x' % x for x in tab[b:b + 8]))
    a.lines.append('.size rope_consts, 1024')
    launch = '; @launch grid=(256,1,1) block=(1024,1,1) lds=%d' % LDS
    return wrap(a.text(), launch, NV)

if __name__ == '__main__':
    kw = {}
    for arg in sys.argv[2:]:
        k, val = arg.split('=')
        kw[k] = int(val) if val.lstrip('-').isdigit() else val
    open(sys.argv[1], 'w').write(gen(**kw))
```

```python
import sys, math
from asmlib import *
from consts import rope_tables, f2u
from gen2 import make_order

def gen(kv_flags='nt', order='kv', orderb='', prog=0, ns=22, n0=12, stamps=0, enc=0, proto='ack', wst=0, zconst=0, touch=0, rot='', probe='', chk=4, ldloc=1, compact=0, outflags='', first=0, lean=0, early=0):
    a = Asm()
    if prog and not orderb: orderb = order
    assert not (prog and proto != 'ack')
    seq = make_order(order)
    kk = 2
    S_WAVE, S_KOFF = 3, 4
    S_SPEC = 5
    S_TBL = 8
    S_QOFF, S_HEAD, S_TMP, S_T0, S_REG, S_TMP2 = 10, 11, 12, 13, 15, 14
    SRD = dict(qk=44, qv=48, ks=52, kz=56, vs=60, vz=64, q=68, qcos=72, qsin=76, out=80, ws=84, dbg=88)
    karg = dict(q=16, qk=18, ks=20, kz=22, qv=24, vs=26, vz=28, qcos=30, qsin=32, out=38, dbg=40, ws=42)
    size = dict(qk=1 << 26, qv=1 << 26, ks=1 << 19, kz=1 << 19, vs=1 << 19, vz=1 << 19,
                q=4096, qcos=256, qsin=256, out=4096, ws=1 << 21, dbg=256)
    S_M1, S_M0, S_C = 16, 18, 22
    S_SC = 92
    def srd(n): return s(SRD[n], 4)
    V_O16 = 1
    V_KZ, V_KS, V_VS, V_VZ, V_B = 3, 4, 5, 6, 7
    V_W = [8, 12]; V_C2 = 16; V_O = 20
    V_S = 24; V_TT = 32
    V_T = 33
    V_SLOT = 40
    NV = V_SLOT + 4 * ns
    assert NV <= 128
    L_SC = 0
    L_QR = 8192
    L_CT = 8704
    L_FLAG = 9728
    L_REC = 10240
    LDS = L_REC + 16384
    stepb = 4096
    NST = 12
    def stamp(k):
        if stamps or (wst and k <= 3):
            r = 100 if k == 0 else 24 + 2 * (k - 1)
            a('s_memrealtime s[%d:%d]' % (r, r + 1))
    def flush_stamps(k_last):
        if not stamps: return
        a('s_waitcnt lgkmcnt(0)')
        a('s_mul_i32 s13, s2, %d' % (NST * 4))
        a('s_add_u32 s13, s13, 0x100000')
        a('s_mov_b64 exec, 1')
        a('s_getreg_b32 s8, hwreg(HW_REG_XCC_ID)')
        for k in range(NST):
            k2 = min(k, k_last)
            r = 100 if k2 == 0 else 24 + 2 * (k2 - 1)
            if k == NST - 1: r = 8
            a('v_mov_b32 v%d, s%d' % (V_T + 6, r))
            a('buffer_store_dword v%d, off, %s, s13 offset:%d' % (V_T + 6, srd('ws'), 4 * k))
            a('s_nop 1')
        a('s_mov_b64 exec, -1')
    def dpp(op, d, s0, s1, ctrl, bank=0xf):
        if s1 is None: a('%s v%d, v%d %s row_mask:0xf bank_mask:0x%x' % (op, d, s0, ctrl, bank))
        else: a('%s v%d, v%d, v%d %s row_mask:0xf bank_mask:0x%x' % (op, d, s0, s1, ctrl, bank))

    a('s_cmp_ge_u32 s2, 256')
    a('s_cbranch_scc1 L_end')
    stamp(0)
    if enc: a('s_memrealtime s[100:101]')
    a('s_load_dwordx16 s[16:31], s[0:1], 0')
    a('s_load_dwordx8 s[32:39], s[0:1], 64')
    a('s_load_dwordx4 s[40:43], s[0:1], 96')
    a('v_lshrrev_b32 v1, 6, v0')
    a('v_and_b32 v0, 63, v0')
    a('v_readfirstlane_b32 s%d, v1' % S_WAVE)
    a('v_lshlrev_b32 v%d, 4, v0' % V_O16)
    a('s_and_b32 s%d, s2, 7' % S_TMP)
    a('s_lshl_b32 s%d, s%d, 5' % (S_TMP, S_TMP))
    a('s_lshr_b32 s%d, s2, 3' % S_T0)
    a('s_add_u32 s%d, s%d, s%d' % (S_REG, S_TMP, S_T0))
    a('s_lshr_b32 s%d, s%d, 4' % (S_HEAD, S_REG))
    a('s_lshr_b32 s%d, s%d, 2' % (S_TMP, S_WAVE))
    if rot:
        if rot == 'x1':   a('s_and_b32 s%d, s2, 1' % S_T0); a('s_lshl_b32 s%d, s%d, 1' % (S_T0, S_T0))
        elif rot == 'x3': a('s_and_b32 s%d, s2, 3' % S_T0)
        elif rot == 's3': a('s_lshr_b32 s%d, s2, 3' % S_T0)
        elif rot == 'xs': a('s_lshr_b32 s%d, s2, 3' % S_T0); a('s_add_u32 s%d, s%d, s2' % (S_T0, S_T0))
        elif rot == 'x6': a('s_lshr_b32 s%d, s2, 1' % S_T0)
        a('s_add_u32 s%d, s%d, s%d' % (S_TMP, S_TMP, S_T0))
        a('s_and_b32 s%d, s%d, 3' % (S_TMP, S_TMP))
    a('s_lshl_b32 s%d, s%d, 6' % (S_TMP, S_TMP))
    a('s_and_b32 s%d, s%d, 3' % (S_T0, S_WAVE))
    a('s_add_u32 s%d, s%d, s%d' % (S_TMP2, S_TMP, S_T0))
    a('s_lshl_b32 s%d, s%d, 18' % (S_KOFF, S_REG))
    a('s_lshl_b32 s%d, s%d, 10' % (S_T0, S_TMP2))
    a('s_add_u32 s%d, s%d, s%d' % (S_KOFF, S_KOFF, S_T0))
    for n in ('qk', 'qv'):
        a('s_mov_b32 s%d, 0x%x' % (SRD[n] + 2, size[n]))
        a('s_mov_b32 s%d, 0x00020000' % (SRD[n] + 3))
    a('s_and_b32 s%d, s%d, 15' % (S_T0, S_REG))
    a('s_lshl_b32 s%d, s%d, 9' % (S_T0, S_T0))
    a('s_lshl_b32 s%d, s%d, 1' % (S_TMP2, S_TMP2))
    a('s_lshl_b32 s%d, s%d, 8' % (S_QOFF, S_HEAD))
    a('s_getpc_b64 s[%d:%d]' % (S_TBL, S_TBL + 1))
    a.label('L_pc')
    a('s_add_u32 s%d, s%d, rope_consts-L_pc' % (S_TBL, S_TBL))
    a('s_addc_u32 s%d, s%d, 0' % (S_TBL + 1, S_TBL + 1))
    a('s_waitcnt lgkmcnt(0)')
    def mksrd(n, full=True):
        a('s_mov_b64 s[%d:%d], s[%d:%d]' % (SRD[n], SRD[n] + 1, karg[n], karg[n] + 1))
        if full:
            a('s_mov_b32 s%d, 0x%x' % (SRD[n] + 2, size[n]))
            a('s_mov_b32 s%d, 0x00020000' % (SRD[n] + 3))
    mksrd('qk', False); mksrd('qv', False)
    free = list(range(ns))
    where = {}
    nxt = [0]
    def slot_reg(sl): return V_SLOT + 4 * sl
    def issue_next():
        if nxt[0] >= len(seq): return False
        kind, i = seq[nxt[0]]; nxt[0] += 1
        sl = free.pop(0)
        where[(kind, i)] = sl
        if i == 0:
            so = 's%d' % S_KOFF
        else:
            a('s_add_u32 s%d, s%d, %d' % (S_TMP, S_KOFF, i * stepb)); so = 's%d' % S_TMP
        a.vmem('buffer_load_dwordx4 %s, v%d, %s, %s offen %s' % (
            v(slot_reg(sl), 4), V_O16, srd('qk' if kind == 'k' else 'qv'), so, kv_flags), '%s%d' % (kind, i))
        return True
    late = [free.pop(), free.pop(), free.pop()]
    RH, RL, SD = slot_reg(late[0]), slot_reg(late[1]), slot_reg(late[2])
    assert n0 <= ns - 3
    a('s_cmp_ge_u32 s%d, 4' % S_WAVE)
    a('s_cbranch_scc1 L_bar1')
    for _ in range(first):
        issue_next()
    if touch:
        mksrd('ws'); mksrd('dbg'); mksrd('out')
        a('s_cmp_lg_u32 s%d, %d' % (S_WAVE, touch - 1))
        a('s_cbranch_scc1 L_notouch')
        a('s_lshl_b32 s%d, s%d, 10' % (S_TMP, S_REG))
        a('buffer_load_dword v%d, off, %s, s%d' % (V_S + 4, srd('ws'), S_TMP))
        a('buffer_load_dword v%d, off, %s, 0' % (V_S + 5, srd('dbg')))
        a('buffer_load_dword v%d, off, %s, s%d' % (V_S + 6, srd('out'), S_QOFF))
        a.label('L_notouch')
    a('s_cmp_eq_u32 s%d, 0' % S_WAVE)
    a('s_cselect_b32 s%d, s%d, s%d' % (S_SC, karg['kz'], karg['ks']))
    a('s_cselect_b32 s%d, s%d, s%d' % (S_SC + 1, karg['kz'] + 1, karg['ks'] + 1))
    a('s_cmp_eq_u32 s%d, 2' % S_WAVE)
    a('s_cselect_b32 s%d, s%d, s%d' % (S_SC, karg['vs'], S_SC))
    a('s_cselect_b32 s%d, s%d, s%d' % (S_SC + 1, karg['vs'] + 1, S_SC + 1))
    a('s_cmp_eq_u32 s%d, 3' % S_WAVE)
    a('s_cselect_b32 s%d, s%d, s%d' % (S_SC, karg['vz'], S_SC))
    a('s_cselect_b32 s%d, s%d, s%d' % (S_SC + 1, karg['vz'] + 1, S_SC + 1))
    a('s_mov_b32 s%d, 0x%x' % (S_SC + 2, 1 << 19))
    a('s_mov_b32 s%d, 0x00020000' % (S_SC + 3))
    a('s_lshl_b32 s%d, s%d, 11' % (S_TMP, S_WAVE))
    a('s_mov_b32 m0, s%d' % S_TMP)
    a('s_lshl_b32 s%d, s%d, 11' % (S_TMP, S_REG))
    a.vmem('buffer_load_dwordx4 v%d, %s, s%d offen lds' % (V_O16, s(S_SC, 4), S_TMP), 'su')
    a.vmem('buffer_load_dwordx4 v%d, %s, s%d offen offset:1024 lds' % (V_O16, s(S_SC, 4), S_TMP), 'su')
    QA, QB, CA, SA = V_S, V_S + 1, V_S + 2, V_S + 3
    mksrd('q'); mksrd('qcos'); mksrd('qsin')
    a('s_lshl_b32 s%d, s%d, 6' % (S_TMP, S_WAVE))
    a('v_add_u32 v%d, s%d, v0' % (V_T, S_TMP))
    a('v_lshlrev_b32 v%d, 1, v%d' % (V_T + 1, V_T))
    a('v_xor_b32 v%d, 0x80, v%d' % (V_T + 2, V_T + 1))
    if lean:
        a('s_cmp_ge_u32 s%d, 2' % S_WAVE)
        a('s_cbranch_scc1 L_noqld')
    a.vmem('buffer_load_ushort v%d, v%d, %s, s%d offen' % (QA, V_T + 1, srd('q'), S_QOFF), 'su')
    a.vmem('buffer_load_ushort v%d, v%d, %s, s%d offen' % (QB, V_T + 2, srd('q'), S_QOFF), 'su')
    a.vmem('buffer_load_ushort v%d, v%d, %s, 0 offen' % (CA, V_T + 1, srd('qcos')), 'su')
    a.vmem('buffer_load_ushort v%d, v%d, %s, 0 offen' % (SA, V_T + 1, srd('qsin')), 'su')
    if lean:
        a.label('L_noqld')
        a('s_cmp_lg_u32 s%d, 2' % S_WAVE)
        a('s_cbranch_scc1 L_nocld')
    a.vmem('global_load_dwordx4 %s, v%d, s[%d:%d]' % (v(RH, 4), V_O16, S_TBL, S_TBL + 1), 'su')
    if lean:
        a.label('L_nocld')
    for _ in range(n0 - first):
        issue_next()
    a.wait_vm('su')
    a.vm = ['%s%d' % x for x in seq[:n0]]
    T0, T1, T2, T3 = V_T + 3, V_T + 4, V_T + 5, V_T + 6
    for r in (QA, QB, CA, SA):
        a('v_lshlrev_b32 v%d, 16, v%d' % (r, r))
    a('s_cmp_eq_u32 s%d, 0' % S_WAVE)
    a('s_cselect_b32 s%d, 0x80000000, 0' % S_TMP)
    a('v_mul_f32 v%d, v%d, v%d' % (T0, QA, CA))
    a('v_xor_b32 v%d, s%d, v%d' % (QB, S_TMP, QB))
    a('v_mul_f32 v%d, v%d, v%d' % (T1, QB, SA))
    a('v_cvt_pk_bf16_f32 v%d, v%d, v%d' % (T0, T0, T1))
    a('v_lshlrev_b32 v%d, 16, v%d' % (T1, T0))
    a('v_and_b32 v%d, 0xffff0000, v%d' % (T0, T0))
    a('v_add_f32 v%d, v%d, v%d' % (T0, T0, T1))
    a('v_cvt_pk_bf16_f32 v%d, v%d, v%d' % (T0, T0, T0))
    a('v_lshlrev_b32 v%d, 16, v%d' % (T0, T0))
    a('v_lshlrev_b32 v%d, 2, v%d' % (V_T, V_T))
    a('s_cmp_ge_u32 s%d, 2' % S_WAVE)
    a('s_cbranch_scc1 L_noq')
    a('ds_write_b32 v%d, v%d offset:%d' % (V_T, T0, L_QR))
    a.label('L_noq')
    a('s_cmp_lg_u32 s%d, 2' % S_WAVE)
    a('s_cbranch_scc1 L_noc')
    a('ds_write_b128 v%d, %s offset:%d' % (V_O16, v(RH, 4), L_CT))
    a.label('L_noc')
    a('s_waitcnt lgkmcnt(0)')
    a.label('L_bar1')
    a('s_barrier')
    if early:
        assert not orderb
        a('s_cmp_lt_u32 s%d, 4' % S_WAVE)
        a('s_cbranch_scc1 L_issued0')
        for kind, i in seq[:n0]:
            if i == 0:
                so = 's%d' % S_KOFF
            else:
                a('s_add_u32 s%d, s%d, %d' % (S_TMP, S_KOFF, i * stepb)); so = 's%d' % S_TMP
            a('buffer_load_dwordx4 %s, v%d, %s, %s offen %s' % (
                v(slot_reg(where[(kind, i)]), 4), V_O16, srd('qk' if kind == 'k' else 'qv'), so, kv_flags))
        a.label('L_issued0')
    for n in ('out', 'ws', 'dbg'):
        mksrd(n)
    for r, val in ((S_M1, 0xcccccccc), (S_M0, 0xaaaaaaaa)):
        a('s_mov_b32 s%d, 0x%x' % (r, val)); a('s_mov_b32 s%d, 0x%x' % (r + 1, val))
    a('s_mov_b32 s%d, 0x%08x' % (S_C, f2u((128.0 ** -0.5) * math.log2(math.e))))
    if proto == 'loc':
        a('s_cmp_lg_u32 s%d, 1' % S_WAVE)
        a('s_cbranch_scc1 L_nopub')
        a('s_getreg_b32 s%d, hwreg(HW_REG_XCC_ID, 0, 4)' % S_TMP)
        a('s_cmp_gt_u32 s%d, 7' % S_TMP)
        a('s_cbranch_scc1 L_nopub')
        a('s_mul_i32 s%d, s%d, 5' % (S_TMP, S_TMP))
        a('s_lshl_b64 s[96:97], 1, s%d' % S_TMP)
        a('s_mov_b64 exec, 1')
        a('v_mov_b32 v%d, s96' % V_S)
        a('v_mov_b32 v%d, s97' % (V_S + 1))
        a('s_lshl_b32 s%d, s%d, 4' % (S_TMP, S_HEAD))
        a('buffer_atomic_add_x2 %s, off, %s, s%d offset:8 sc1' % (v(V_S, 2), srd('dbg'), S_TMP))
        a('s_mov_b64 exec, -1')
        a.label('L_nopub')
    QRA, QRB = V_W[1], V_O
    a('v_and_b32 v%d, 31, v0' % V_T)
    a('v_lshlrev_b32 v%d, 4, v%d' % (V_T, V_T))
    a('v_xor_b32 v%d, 0x100, v%d' % (V_T + 1, V_T))
    a('v_and_b32 v%d, 15, v0' % (V_T + 2))
    a('v_lshlrev_b32 v%d, 4, v%d' % (V_T + 3, V_T + 2))
    a('ds_read_b128 %s, v%d offset:%d' % (v(QRA, 4), V_T, L_QR))
    a('ds_read_b128 %s, v%d offset:%d' % (v(QRB, 4), V_T + 1, L_QR))
    a('ds_read_b128 %s, v%d offset:%d' % (v(RH, 4), V_T + 3, L_CT))
    a('ds_read_b128 %s, v%d offset:%d' % (v(RL, 4), V_T + 3, L_CT + 256))
    a('ds_read_b128 %s, v%d offset:%d' % (v(V_C2, 4), V_T + 3, L_CT + 512))
    a('ds_read_b128 %s, v%d offset:%d' % (v(SD, 4), V_T + 3, L_CT + 768))
    a('v_lshlrev_b32 v%d, 5, v%d' % (V_T + 2, V_T + 2))
    a('v_lshrrev_b32 v%d, 4, v0' % (V_T + 4))
    a('v_lshl_add_u32 v%d, v%d, 1, v%d' % (V_T + 2, V_T + 4, V_T + 2))
    a('s_lshl_b32 s%d, s%d, 2' % (S_TMP, S_TMP2))
    a('v_add_u32 v%d, s%d, v%d' % (V_T + 2, S_TMP, V_T + 2))
    for k, r in enumerate((V_KZ, V_KS, V_VS, V_VZ)):
        a('ds_read_u16 v%d, v%d offset:%d' % (r, V_T + 2, L_SC + 2048 * k))
    SM, SN, TF = V_T + 4, V_T + 5, V_T + 6
    a('v_and_b32 v%d, 16, v0' % SM)
    a('v_lshlrev_b32 v%d, 27, v%d' % (SN, SM))
    a('v_lshrrev_b32 v%d, 5, v0' % TF)
    a('s_add_u32 s%d, s%d, s%d' % (S_TMP, S_T0, S_TMP2))
    a('v_add_u32 v%d, s%d, v%d' % (TF, S_TMP, TF))
    a('v_cvt_f32_u32 v%d, v%d' % (TF, TF))
    a('s_waitcnt lgkmcnt(0)')
    for j in range(4): a('v_xor_b32 v%d, v%d, v%d' % (QRB + j, SN, QRB + j))
    for r in (V_KZ, V_KS, V_VS, V_VZ): a('v_lshlrev_b32 v%d, 16, v%d' % (r, r))
    for j in range(4): a('v_mul_f32 v%d, v%d, v%d' % (RH + j, TF, RH + j))
    for j in range(4): a('v_fract_f32 v%d, v%d' % (RH + j, RH + j))
    for j in range(4): a('v_fmac_f32 v%d, v%d, v%d' % (RH + j, TF, RL + j))
    for j in range(4): a('v_sin_f32 v%d, v%d' % (RL + j, RH + j))
    for j in range(4): a('v_cos_f32 v%d, v%d' % (RH + j, RH + j))
    W0, W1 = V_W
    a('s_nop 0')
    for j in range(4): a('v_mul_f32 v%d, v%d, v%d' % (W0 + j, QRA + j, RH + j))
    for j in range(4): a('v_fmac_f32 v%d, v%d, v%d' % (W0 + j, QRB + j, RL + j))
    for j in range(4): a('v_mul_f32 v%d, v%d, v%d' % (V_S + j, QRB + j, RH + j))
    for j in range(4): a('v_fma_f32 v%d, -v%d, v%d, v%d' % (V_S + j, QRA + j, RL + j, V_S + j))
    for j in range(4): a('v_mul_f32 v%d, v%d, v%d' % (W1 + j, V_C2 + j, W0 + j))
    for j in range(4): a('v_mul_f32 v%d, v%d, v%d' % (V_S + j, SD + j, V_S + j))
    for j in range(4): a('v_fma_f32 v%d, v%d, 0.5, -v%d' % (W1 + j, W1 + j, V_S + j))
    def main_body(tag, seq_, pre_issued):
        nonlocal seq, free, where
        if not pre_issued:
            seq = seq_; free = list(range(ns)); where = {}; nxt[0] = 0; a.vm = []
            while free:
                if not issue_next(): break
        else:
            if not early:
                a('s_cmp_lt_u32 s%d, 4' % S_WAVE)
                a('s_cbranch_scc1 L_issued')
            for kind, i in (seq[:n0] if not early else []):
                if i == 0:
                    so = 's%d' % S_KOFF
                else:
                    a('s_add_u32 s%d, s%d, %d' % (S_TMP, S_KOFF, i * stepb)); so = 's%d' % S_TMP
                a('buffer_load_dwordx4 %s, v%d, %s, %s offen %s' % (
                    v(slot_reg(where[(kind, i)]), 4), V_O16, srd('qk' if kind == 'k' else 'qv'), so, kv_flags))
            if not early: a.label('L_issued')
            for sl in late: free.append(sl)
            while free:
                if not issue_next(): break
        if prog and not pre_issued:
            a('s_barrier')
        for i in range(16):
            K = slot_reg(where[('k', i)])
            cur, prev = V_W[i & 1], V_W[(i + 1) & 1]
            dpp('v_mov_b32_dpp', V_B, V_KZ, None, 'row_newbcast:%d' % i)
            if i >= 8:
                dpp('v_add_f32_dpp', V_S + i - 8, V_S + i - 8, V_S + i - 8, 'row_mirror', 0x3)
            a.wait_vm_if('k%d' % i)
            if i == 0: stamp(1)
            for j in range(4): a('v_cvt_f32_i32 v%d, v%d' % (K + j, K + j))
            for j in range(4): a('v_sub_f32 v%d, v%d, v%d' % (K + j, K + j, V_B))
            D = V_S + i if i < 8 else V_TT
            a('v_mul_f32 v%d, v%d, v%d' % (D, K, cur))
            for j in range(1, 4): a('v_fmac_f32 v%d, v%d, v%d' % (D, K + j, cur + j))
            free.append(where[('k', i)])
            issue_next()
            if i < 15:
                for j in range(4):
                    a('v_fma_f32 v%d, v%d, v%d, -v%d' % (prev + j, V_C2 + j, cur + j, prev + j))
            else:
                a('s_nop 1')
            if i >= 8:
                dpp('v_add_f32_dpp', V_S + i - 8, V_TT, V_TT, 'row_mirror', 0xc)
        while free:
            if not issue_next(): break
        assert nxt[0] == len(seq)
        stamp(2)
        a('s_nop 1')
        for i in range(4): dpp('v_add_f32_dpp', V_S + i, V_S + i, V_S + i, 'row_half_mirror', 0x5)
        for i in range(4): dpp('v_add_f32_dpp', V_S + i, V_S + 4 + i, V_S + 4 + i, 'row_half_mirror', 0xa)
        for i in range(4): dpp('v_add_f32_dpp', V_S + 4 + i, V_S + i, V_S + i, 'quad_perm:[2,3,0,1]')
        a('v_cndmask_b32 v%d, v%d, v%d, s[%d:%d]' % (V_S, V_S + 4, V_S + 6, S_M1, S_M1 + 1))
        a('v_cndmask_b32 v%d, v%d, v%d, s[%d:%d]' % (V_S + 1, V_S + 5, V_S + 7, S_M1, S_M1 + 1))
        a('s_nop 0')
        dpp('v_add_f32_dpp', V_S + 2, V_S, V_S, 'quad_perm:[1,0,3,2]')
        dpp('v_add_f32_dpp', V_S + 3, V_S + 1, V_S + 1, 'quad_perm:[1,0,3,2]')
        a('v_cndmask_b32 v%d, v%d, v%d, s[%d:%d]' % (V_S, V_S + 2, V_S + 3, S_M0, S_M0 + 1))
        LG, X, Y = V_S, V_S + 1, V_S + 2
        a('v_mul_f32 v%d, v%d, v%d' % (LG, LG, V_KS))
        a('v_mov_b32 v%d, v%d' % (X, LG))
        a('s_nop 1')
        a('v_permlane16_swap_b32 v%d, v%d' % (LG, X))
        a('v_add_f32 v%d, v%d, v%d' % (LG, LG, X))
        a('v_mul_f32 v%d, s%d, v%d' % (LG, S_C, LG))
        a('s_nop 1')
        dpp('v_max_f32_dpp', X, LG, LG, 'row_ror:8')
        for n in (4, 2, 1):
            a('s_nop 1')
            dpp('v_max_f32_dpp', X, X, X, 'row_ror:%d' % n)
        a('v_mov_b32 v%d, v%d' % (Y, X))
        a('s_nop 1')
        a('v_permlane32_swap_b32 v%d, v%d' % (X, Y))
        VM = V_S + 3
        a('v_max_f32 v%d, v%d, v%d' % (VM, X, Y))
        PP, AA, AZ, VL = V_S + 4, V_S + 5, V_S + 6, V_S + 7
        a('v_sub_f32 v%d, v%d, v%d' % (PP, LG, VM))
        a('v_exp_f32 v%d, v%d' % (PP, PP))
        a('s_nop 0')
        a('v_mul_f32 v%d, v%d, v%d' % (AA, PP, V_VS))
        a('v_mul_f32 v%d, v%d, v%d' % (AZ, AA, V_VZ))
        a('s_nop 0')
        for n in (8, 4, 2, 1):
            dpp('v_add_f32_dpp', PP, PP, PP, 'row_ror:%d' % n)
            dpp('v_add_f32_dpp', AZ, AZ, AZ, 'row_ror:%d' % n)
            a('s_nop 0')
        for j in range(4): a('v_sub_f32 v%d, 0, v%d' % (V_O + j, AZ))
        a('v_mov_b32 v%d, v%d' % (VL, PP))
        a('s_nop 1')
        a('v_permlane32_swap_b32 v%d, v%d' % (PP, VL))
        a('v_add_f32 v%d, v%d, v%d' % (VL, VL, PP))
        for i in range(16):
            R = slot_reg(where[('v', i)])
            dpp('v_mov_b32_dpp', V_B, AA, None, 'row_newbcast:%d' % i)
            a.wait_vm_if('v%d' % i)
            for j in range(4): a('v_cvt_f32_i32 v%d, v%d' % (R + j, R + j))
            for j in range(4): a('v_fmac_f32 v%d, v%d, v%d' % (V_O + j, V_B, R + j))
        stamp(3)
    if orderb:
        a('s_cmp_ge_u32 s%d, 12' % S_WAVE)
        a('s_cbranch_scc1 L_bodyb')
    main_body('a', seq, True)
    VL, VM = V_S + 7, V_S + 3
    if orderb:
        a('s_branch L_rec')
        a.label('L_bodyb')
        main_body('b', make_order(orderb), False)
        a.label('L_rec')
    a('s_nop 1')
    a('v_permlane32_swap_b32 v%d, v%d' % (V_O, V_O + 2))
    a('v_permlane32_swap_b32 v%d, v%d' % (V_O + 1, V_O + 3))
    E = V_T + 3
    a('s_lshl_b32 s%d, s%d, 10' % (S_TMP, S_WAVE))
    a('v_add_f32 v%d, v%d, v%d' % (E, V_O, V_O + 2))
    a('v_add_f32 v%d, v%d, v%d' % (E + 1, V_O + 1, V_O + 3))
    a('v_mov_b32 v%d, v%d' % (E + 2, VL))
    a('v_mov_b32 v%d, v%d' % (E + 3, VM))
    a('v_add_u32 v%d, s%d, v%d' % (V_T, S_TMP, V_O16))
    a('ds_write_b128 v%d, %s offset:%d' % (V_T, v(E, 4), L_REC))
    a('s_waitcnt lgkmcnt(0)')
    if prog:
        a('s_cmp_ge_u32 s%d, 12' % S_WAVE)
        a('s_cbranch_scc1 L_nob15')
        a('s_barrier')
        a.label('L_nob15')
    if wst:
        a('s_lshl_b32 s13, s2, 4')
        a('s_add_u32 s13, s13, s%d' % S_WAVE)
        a('s_lshl_b32 s13, s13, 4')
        a('s_add_u32 s13, s13, 0x100000')
        a('s_mov_b64 exec, 1')
        for k, r in enumerate((100, 24, 26, 28)):
            a('v_mov_b32 v%d, s%d' % (V_T + 1, r))
            a('buffer_store_dword v%d, off, %s, s13 offset:%d' % (V_T + 1, srd('ws'), 4 * k))
            a('s_nop 1')
        a('s_mov_b64 exec, -1')
    if proto == 'loc':
        a('s_cmp_lg_u32 s%d, %d' % (S_WAVE, chk))
        a('s_cbranch_scc1 L_nochk')
        a('s_lshl_b32 s%d, s%d, 4' % (S_TMP, S_HEAD))
        a('buffer_load_dwordx2 %s, off, %s, s%d offset:8 sc1' % (v(V_SLOT, 2), srd('dbg'), S_TMP))
        a('s_getreg_b32 s%d, hwreg(HW_REG_XCC_ID, 0, 4)' % S_TMP2)
        a('s_min_u32 s%d, s%d, 8' % (S_TMP2, S_TMP2))
        a('s_mul_i32 s%d, s%d, 5' % (S_TMP2, S_TMP2))
        a('s_waitcnt vmcnt(0)')
        a('v_readfirstlane_b32 s96, v%d' % V_SLOT)
        a('v_readfirstlane_b32 s97, v%d' % (V_SLOT + 1))
        a('v_mov_b32 v%d, %d' % (V_T, L_FLAG))
        a('s_nop 2')
        a('s_lshr_b64 s[96:97], s[96:97], s%d' % S_TMP2)
        a('s_and_b32 s96, s96, 31')
        a('v_mov_b32 v%d, s96' % V_B)
        a('ds_write_b32 v%d, v%d' % (V_T, V_B))
        a('s_waitcnt lgkmcnt(0)')
        a.label('L_nochk')
    if probe:
        a('s_cmp_lg_u32 s%d, 1' % S_WAVE)
        a('s_cbranch_scc1 L_noprobe')
        for j in range(4): a('v_mov_b32 v%d, -1' % (V_SLOT + j))
        a('s_lshl_b32 s%d, s%d, 10' % (S_TMP, S_REG))
        a('s_add_u32 s%d, s%d, 0x80000' % (S_TMP, S_TMP))
        if probe == 'st1':  a('buffer_store_dwordx4 %s, v%d, %s, s%d offen sc1' % (v(V_SLOT, 4), V_O16, srd('ws'), S_TMP))
        if probe == 'st0':  a('buffer_store_dwordx4 %s, v%d, %s, s%d offen' % (v(V_SLOT, 4), V_O16, srd('ws'), S_TMP))
        if probe == 'stnt': a('buffer_store_dwordx4 %s, v%d, %s, s%d offen nt' % (v(V_SLOT, 4), V_O16, srd('ws'), S_TMP))
        if probe == 'ld1':  a('buffer_load_dwordx4 %s, v%d, %s, s%d offen sc1' % (v(V_SLOT, 4), V_O16, srd('ws'), S_TMP))
        if probe == 'at':
            a('s_mov_b64 exec, 1')
            a('s_lshl_b32 s%d, s%d, 4' % (S_TMP, S_HEAD))
            a('buffer_atomic_add v%d, off, %s, s%d offset:8 sc1' % (V_SLOT, srd('dbg'), S_TMP))
            a('s_mov_b64 exec, -1')
        a('s_waitcnt vmcnt(0)')
        a.label('L_noprobe')
    if proto == 'tag':
        a('s_cmp_lg_u32 s%d, 1' % S_WAVE)
        a('s_cbranch_scc1 L_noclr')
        for j in range(4): a('v_mov_b32 v%d, -1' % (V_SLOT + j))
        a('s_lshl_b32 s%d, s%d, 10' % (S_TMP, S_REG))
        a('buffer_store_dwordx4 %s, v%d, %s, s%d offen sc1' % (v(V_SLOT, 4), V_O16, srd('ws'), S_TMP))
        a('s_waitcnt vmcnt(0)')
        a.label('L_noclr')
    if proto == 'spec':
        a('s_cmp_lg_u32 s%d, 1' % S_WAVE)
        a('s_cbranch_scc1 L_noclr')
        for j in range(4): a('v_mov_b32 v%d, -1' % (V_SLOT + j))
        a('s_lshl_b32 s%d, s%d, 10' % (S_TMP, S_REG))
        a('buffer_store_dwordx4 %s, v%d, %s, s%d offen sc1' % (v(V_SLOT, 4), V_O16, srd('ws'), S_TMP))
        a('s_waitcnt vmcnt(0)')
        a('s_mov_b64 exec, 1')
        a('v_mov_b32 v%d, 1' % V_B)
        a('s_lshl_b32 s%d, s%d, 4' % (S_TMP, S_HEAD))
        a('buffer_atomic_add v%d, off, %s, s%d offset:8 sc1' % (V_B, srd('dbg'), S_TMP))
        a('s_mov_b64 exec, -1')
        a.label('L_noclr')
        a('s_cmp_lg_u32 s%d, 8' % S_WAVE)
        a('s_cbranch_scc1 L_nochk')
        a('s_lshl_b32 s%d, s%d, 4' % (S_TMP, S_HEAD))
        a('buffer_load_dword v%d, off, %s, s%d offset:8 sc1' % (V_B, srd('dbg'), S_TMP))
        a('v_mov_b32 v%d, %d' % (V_T, L_FLAG))
        a('s_waitcnt vmcnt(0)')
        a('ds_write_b32 v%d, v%d' % (V_T, V_B))
        a('s_waitcnt lgkmcnt(0)')
        a.label('L_nochk')
    a('s_cmp_lg_u32 s%d, 0' % S_WAVE)
    a('s_cbranch_scc1 L_others')
    LM = V_S
    R = lambda i: V_SLOT + 2 * i
    V_C1K, V_O8, V_OUT = V_T, V_T + 1, V_T + 2
    a('v_and_b32 v%d, 15, v0' % V_C1K)
    a('v_lshlrev_b32 v%d, 10, v%d' % (V_C1K, V_C1K))
    a('v_lshlrev_b32 v%d, 3, v0' % V_O8)
    a('v_and_b32 v%d, 31, v0' % V_OUT)
    a('v_lshlrev_b32 v%d, 3, v%d' % (V_OUT, V_OUT))
    a('v_lshrrev_b32 v%d, 5, v0' % V_B)
    a('v_lshl_add_u32 v%d, v%d, 2, v%d' % (V_OUT, V_B, V_OUT))
    def combine():
        F, M_ = V_S + 2, E + 3
        dpp('v_max_f32_dpp', M_, LM + 1, LM + 1, 'row_ror:8')
        for n in (4, 2, 1):
            a('s_nop 1')
            dpp('v_max_f32_dpp', M_, M_, M_, 'row_ror:%d' % n)
        a('v_sub_f32 v%d, v%d, v%d' % (F, LM + 1, M_))
        a('v_exp_f32 v%d, v%d' % (F, F))
        a('s_nop 0')
        a('v_mul_f32 v%d, v%d, v%d' % (E + 2, LM, F))
        a('v_mov_b32 v%d, 0' % E)
        a('v_mov_b32 v%d, 0' % (E + 1))
    def combine2(waitfn):
        F = V_S + 2
        for i in range(16):
            waitfn(i)
            dpp('v_fmac_f32_dpp', E, F, R(i), 'row_newbcast:%d' % i)
            dpp('v_fmac_f32_dpp', E + 1, F, R(i) + 1, 'row_newbcast:%d' % i)
            if i in (0, 2, 4, 6):
                dpp('v_add_f32_dpp', E + 2, E + 2, E + 2, 'row_ror:%d' % (8 >> (i // 2)))
    if prog:
        a('ds_read_b64 %s, v%d offset:%d' % (v(LM, 2), V_C1K, L_REC + 8))
        for w in range(12):
            a('ds_read_b64 %s, v%d offset:%d' % (v(R(w), 2), V_O16, L_REC + 1024 * w))
        a('s_mov_b32 s96, 0xf000f000'); a('s_mov_b32 s97, 0xf000f000')
        a('v_mov_b32 v%d, 0xff800000' % V_B)
        a('s_waitcnt lgkmcnt(12)')
        a('v_cndmask_b32 v%d, v%d, v%d, s[96:97]' % (LM + 1, LM + 1, V_B))
        a('v_mov_b32 v%d, 0' % V_B)
        a('v_cndmask_b32 v%d, v%d, v%d, s[96:97]' % (LM, LM, V_B))
        a('s_nop 0')
        combine()
        F = V_S + 2
        for i in range(12):
            a('s_waitcnt lgkmcnt(%d)' % (11 - i))
            dpp('v_fmac_f32_dpp', E, F, R(i), 'row_newbcast:%d' % i)
            dpp('v_fmac_f32_dpp', E + 1, F, R(i) + 1, 'row_newbcast:%d' % i)
            if i in (0, 2, 4, 6):
                dpp('v_add_f32_dpp', E + 2, E + 2, E + 2, 'row_ror:%d' % (8 >> (i // 2)))
        a('s_barrier')
        stamp(4)
        if stamps: a('s_waitcnt lgkmcnt(0)')
        Q = lambda w: V_SLOT + 4 * w
        for w in range(4):
            a('ds_read_b128 %s, v%d offset:%d' % (v(Q(w), 4), V_O16, L_REC + 1024 * (12 + w)))
        MX = V_S
        a('s_waitcnt lgkmcnt(2)')
        a('v_max3_f32 v%d, v%d, v%d, v%d' % (MX, E + 3, Q(0) + 3, Q(1) + 3))
        a('s_waitcnt lgkmcnt(0)')
        a('v_max3_f32 v%d, v%d, v%d, v%d' % (MX, MX, Q(2) + 3, Q(3) + 3))
        a('v_sub_f32 v%d, v%d, v%d' % (E + 3, E + 3, MX))
        for w in range(4): a('v_sub_f32 v%d, v%d, v%d' % (Q(w) + 3, Q(w) + 3, MX))
        a('v_exp_f32 v%d, v%d' % (E + 3, E + 3))
        for w in range(4): a('v_exp_f32 v%d, v%d' % (Q(w) + 3, Q(w) + 3))
        for j in range(3): a('v_mul_f32 v%d, v%d, v%d' % (E + j, E + j, E + 3))
        for w in range(4):
            for j in range(3): a('v_fmac_f32 v%d, v%d, v%d' % (E + j, Q(w) + j, Q(w) + 3))
        a('v_mov_b32 v%d, v%d' % (E + 3, MX))
    else:
        a('s_barrier')
        stamp(4)
        if stamps: a('s_waitcnt lgkmcnt(0)')
        if proto in ('spec', 'loc'):
            a('v_mov_b32 v%d, %d' % (V_B, L_FLAG))
            a('ds_read_b32 v%d, v%d' % (V_B, V_B))
        a('ds_read_b64 %s, v%d offset:%d' % (v(LM, 2), V_C1K, L_REC + 8))
        for w in range(16):
            a('ds_read_b64 %s, v%d offset:%d' % (v(R(w), 2), V_O16, L_REC + 1024 * w))
        a('s_waitcnt lgkmcnt(15)')
        combine()
        combine2(lambda i: a('s_waitcnt lgkmcnt(%d)' % (15 - i)))
    if proto in ('spec', 'loc'):
        a('v_readfirstlane_b32 s%d, v%d' % (S_SPEC, V_B))
    stamp(5)
    def rec_loads(flags):
        a('buffer_load_dwordx2 %s, v%d, %s, s%d offen offset:%d %s' % (v(LM, 2), V_C1K, srd('ws'), S_REG, 512 if compact else 8, flags))
        for i in range(16):
            if i % 4 == 0: a('s_add_u32 s%d, s%d, %d' % (S_TMP, S_REG, (i // 4) * 4096))
            a('buffer_load_dwordx2 %s, v%d, %s, s%d offen offset:%d %s' % (v(R(i), 2), V_O8 if compact else V_O16, srd('ws'), S_TMP, (i % 4) * 1024, flags))
    a('s_lshl_b32 s%d, s%d, 10' % (S_TMP, S_REG))
    if proto == 'loc':
        a('s_nop 1')
        a('s_cmp_eq_u32 s%d, 16' % S_SPEC)
        a('s_cbranch_scc1 L_stloc')
        a('buffer_store_dwordx4 %s, v%d, %s, s%d offen sc1' % (v(E, 4), V_O16, srd('ws'), S_TMP))
        a('s_branch L_stdone')
        a.label('L_stloc')
        a('buffer_store_dwordx4 %s, v%d, %s, s%d offen' % (v(E, 4), V_O16, srd('ws'), S_TMP))
        a.label('L_stdone')
    elif compact:
        a('buffer_store_dwordx2 %s, v%d, %s, s%d offen sc1' % (v(E, 2), V_O8, srd('ws'), S_TMP))
        a('s_mov_b64 exec, 0xffff')
        a('buffer_store_dwordx2 %s, v%d, %s, s%d offen offset:512 sc1' % (v(E + 2, 2), V_O8, srd('ws'), S_TMP))
    else:
        a('buffer_store_dwordx4 %s, v%d, %s, s%d offen sc1' % (v(E, 4), V_O16, srd('ws'), S_TMP))
    a('s_mov_b64 exec, 1')
    if proto in ('ack', 'loc'):
        a('s_waitcnt vmcnt(0)')
    stamp(6)
    a('v_mov_b32 v%d, 1' % V_B)
    a('s_lshl_b32 s%d, s%d, 4' % (S_TMP, S_HEAD))
    a('buffer_atomic_add v%d, off, %s, s%d sc0 sc1' % (V_B, srd('dbg'), S_TMP))
    a('s_mov_b64 exec, -1')
    a('s_lshl_b32 s%d, s%d, 14' % (S_REG, S_HEAD))
    if proto in ('spec', 'tag'):
        if proto == 'spec':
            a('s_cmp_lg_u32 s%d, 16' % S_SPEC)
            a('s_cbranch_scc1 L_nospec')
            rec_loads('sc1')
            a('s_waitcnt vmcnt(0)')
            a('v_readfirstlane_b32 s%d, v%d' % (S_TMP2, V_B))
            stamp(7)
            a('s_nop 3')
            a('s_cmp_lg_u32 s%d, 15' % S_TMP2)
            a('s_cbranch_scc1 L_notlast' if stamps else 's_cbranch_scc1 L_end')
            a('s_movk_i32 s%d, 0x7fff' % S_SPEC)
            a('s_branch L_check')
            a.label('L_nospec')
        a('s_waitcnt vmcnt(0)')
        a('v_readfirstlane_b32 s%d, v%d' % (S_TMP2, V_B))
        if proto == 'tag': stamp(7)
        a('s_nop 3')
        a('s_cmp_lg_u32 s%d, 15' % S_TMP2)
        a('s_cbranch_scc1 L_notlast' if stamps else 's_cbranch_scc1 L_end')
        a('s_movk_i32 s%d, 0x7fff' % S_SPEC)
        a.label('L_reload')
        rec_loads('sc1')
        a('s_waitcnt vmcnt(0)')
        a.label('L_check')
        X0 = V_B
        a('v_max3_u32 v%d, v%d, v%d, v%d' % (X0, LM, LM + 1, R(0)))
        regs = [R(0) + 1] + [R(i) + k for i in range(1, 16) for k in range(2)]
        regs = regs
        while len(regs) >= 2:
            a('v_max3_u32 v%d, v%d, v%d, v%d' % (X0, X0, regs[0], regs[1])); regs = regs[2:]
        if regs: a('v_max_u32 v%d, v%d, v%d' % (X0, X0, regs[0]))
        a('v_cmp_eq_u32 vcc, -1, v%d' % X0)
        a('s_sub_u32 s%d, s%d, 1' % (S_SPEC, S_SPEC))
        a('s_cbranch_scc1 L_end')
        a('s_cbranch_vccnz L_reload')
        stamp(8)
        combine()
        combine2(lambda i: a('s_nop 0'))
    else:
        a('s_waitcnt vmcnt(0)')
        a('v_readfirstlane_b32 s%d, v%d' % (S_TMP2, V_B))
        stamp(7)
        a('s_nop 3')
        a('s_cmp_lg_u32 s%d, 15' % S_TMP2)
        a('s_cbranch_scc1 L_notlast' if stamps else 's_cbranch_scc1 L_end')
        if proto == 'loc' and ldloc:
            a('s_cmp_eq_u32 s%d, 16' % S_SPEC)
            a('s_cbranch_scc1 L_ldloc')
            rec_loads('sc1')
            a('s_branch L_lddone')
            a.label('L_ldloc')
            rec_loads('')
            a.label('L_lddone')
        else:
            rec_loads('sc1')
        a('s_waitcnt vmcnt(16)')
        stamp(8)
        combine()
        combine2(lambda i: a('s_waitcnt vmcnt(%d)' % (15 - i)))
    stamp(9)
    a('v_rcp_f32 v%d, v%d' % (E + 2, E + 2))
    a('s_nop 0')
    a('v_mul_f32 v%d, v%d, v%d' % (E, E, E + 2))
    a('v_mul_f32 v%d, v%d, v%d' % (E + 1, E + 1, E + 2))
    a('v_cvt_pk_bf16_f32 v%d, v%d, v%d' % (E, E, E + 1))
    a('buffer_store_dword v%d, v%d, %s, s%d offen %s' % (E, V_OUT, srd('out'), S_QOFF, outflags))
    if enc:
        a('s_waitcnt vmcnt(0)')
        a('s_memrealtime s[24:25]')
        a('s_waitcnt lgkmcnt(0)')
        a('s_sub_u32 s26, s24, s100')
        a('s_mul_i32 s26, s26, %d' % enc)
        a.label('L_spin')
        a('s_memrealtime s[28:29]')
        a('s_waitcnt lgkmcnt(0)')
        a('s_sub_u32 s27, s28, s24')
        a('s_cmp_lt_u32 s27, s26')
        a('s_cbranch_scc1 L_spin')
    if stamps:
        a('s_waitcnt vmcnt(0)')
        stamp(10)
        flush_stamps(10)
        a('s_endpgm')
        a.label('L_notlast')
        flush_stamps(7)
    a('s_endpgm')
    a.label('L_others')
    a('s_barrier')
    a.label('L_end')
    a('s_endpgm')
    rh, rl, c2, sd = rope_tables(8)
    a.lines.append('.p2align 6')
    a.lines.append('.type rope_consts,@object')
    a.lines.append('rope_consts:')
    for tab in (rh, rl, c2, sd):
        for b in range(0, 64, 8):
            a.lines.append('    .long ' + ', '.join('0x%08x' % x for x in tab[b:b + 8]))
    a.lines.append('.size rope_consts, 1024')
    launch = '; @launch grid=(256,1,1) block=(1024,1,1) lds=%d' % LDS
    notes = '''; Single-query attention over a quantised KV cache, split over 256 workgroups (16 heads x 16 ranges of 512 tokens).
; * each wave handles 32 tokens: dequantise K, dot with the position-rotated query, softmax with the true wave maximum,
;   cos / sin(t * 10000^(-f/64)); they are regenerated from the 64 inverse frequencies (table rope_consts at the end
'''
    return wrap(a.text(), launch, NV, notes=notes)

if __name__ == '__main__':
    kw = {}
    for arg in sys.argv[2:]:
        k, val = arg.split('=')
        kw[k] = int(val) if val.lstrip('-').isdigit() else val
    open(sys.argv[1], 'w').write(gen(**kw))
```

```python
import sys, math
from asmlib import *
from consts import rope_tables, f2u
from gen2 import make_order

def gen(kv_flags='nt', order='kv', orderb='', prog=0, ns=22, n0=12, stamps=0, enc=0, proto='ack', wst=0, zconst=0, touch=0, rot='', probe='', chk=4, ldloc=1, compact=0, outflags='', first=0, lean=0, early=0, pst=0):
    a = Asm()
    if prog and not orderb: orderb = order
    assert not (prog and proto != 'ack')
    seq = make_order(order)
    kk = 2
    S_WAVE, S_KOFF = 3, 4
    S_SPEC = 5
    S_TBL = 8
    S_QOFF, S_HEAD, S_TMP, S_T0, S_REG, S_TMP2 = 10, 11, 12, 13, 15, 14
    SRD = dict(qk=44, qv=48, ks=52, kz=56, vs=60, vz=64, q=68, qcos=72, qsin=76, out=80, ws=84, dbg=88)
    karg = dict(q=16, qk=18, ks=20, kz=22, qv=24, vs=26, vz=28, qcos=30, qsin=32, out=38, dbg=40, ws=42)
    size = dict(qk=1 << 26, qv=1 << 26, ks=1 << 19, kz=1 << 19, vs=1 << 19, vz=1 << 19,
                q=4096, qcos=256, qsin=256, out=4096, ws=1 << 21, dbg=256)
    S_M1, S_M0, S_C = 16, 18, 22
    S_SC = 92
    def srd(n): return s(SRD[n], 4)
    V_O16 = 1
    V_KZ, V_KS, V_VS, V_VZ, V_B = 3, 4, 5, 6, 7
    V_W = [8, 12]; V_C2 = 16; V_O = 20
    V_S = 24; V_TT = 32
    V_T = 33
    V_SLOT = 40
    NV = V_SLOT + 4 * ns
    assert NV <= 128
    L_SC = 0
    L_QR = 8192
    L_CT = 8704
    L_FLAG = 9728
    L_REC = 10240
    LDS = L_REC + 16384
    stepb = 4096
    NST = 12
    def stamp(k):
        if stamps or (wst and k <= 3):
            r = 100 if k == 0 else 24 + 2 * (k - 1)
            a('s_memrealtime s[%d:%d]' % (r, r + 1))
    def flush_stamps(k_last):
        if not stamps: return
        a('s_waitcnt lgkmcnt(0)')
        a('s_mul_i32 s13, s2, %d' % (NST * 4))
        a('s_add_u32 s13, s13, 0x100000')
        a('s_mov_b64 exec, 1')
        a('s_getreg_b32 s8, hwreg(HW_REG_XCC_ID)')
        for k in range(NST):
            k2 = min(k, k_last)
            r = 100 if k2 == 0 else 24 + 2 * (k2 - 1)
            if pst and k2 in (1, 2, 3): r = {1: 96, 2: 98, 3: 6}[k2]
            if k == NST - 1: r = 8
            a('v_mov_b32 v%d, s%d' % (V_T + 6, r))
            a('buffer_store_dword v%d, off, %s, s13 offset:%d' % (V_T + 6, srd('ws'), 4 * k))
            a('s_nop 1')
        a('s_mov_b64 exec, -1')
    def dpp(op, d, s0, s1, ctrl, bank=0xf):
        if s1 is None: a('%s v%d, v%d %s row_mask:0xf bank_mask:0x%x' % (op, d, s0, ctrl, bank))
        else: a('%s v%d, v%d, v%d %s row_mask:0xf bank_mask:0x%x' % (op, d, s0, s1, ctrl, bank))

    a('s_cmp_ge_u32 s2, 256')
    a('s_cbranch_scc1 L_end')
    stamp(0)
    if enc: a('s_memrealtime s[100:101]')
    a('s_load_dwordx16 s[16:31], s[0:1], 0')
    a('s_load_dwordx8 s[32:39], s[0:1], 64')
    a('s_load_dwordx4 s[40:43], s[0:1], 96')
    a('v_lshrrev_b32 v1, 6, v0')
    a('v_and_b32 v0, 63, v0')
    a('v_readfirstlane_b32 s%d, v1' % S_WAVE)
    a('v_lshlrev_b32 v%d, 4, v0' % V_O16)
    a('s_and_b32 s%d, s2, 7' % S_TMP)
    a('s_lshl_b32 s%d, s%d, 5' % (S_TMP, S_TMP))
    a('s_lshr_b32 s%d, s2, 3' % S_T0)
    a('s_add_u32 s%d, s%d, s%d' % (S_REG, S_TMP, S_T0))
    a('s_lshr_b32 s%d, s%d, 4' % (S_HEAD, S_REG))
    a('s_lshr_b32 s%d, s%d, 2' % (S_TMP, S_WAVE))
    if rot:
        a.comment('the quarter a wave group walks is rotated by (wg + (wg >> 3)) & 3, so that neighbours are out of phase')
        if rot == 'x1':   a('s_and_b32 s%d, s2, 1' % S_T0); a('s_lshl_b32 s%d, s%d, 1' % (S_T0, S_T0))
        elif rot == 'x3': a('s_and_b32 s%d, s2, 3' % S_T0)
        elif rot == 's3': a('s_lshr_b32 s%d, s2, 3' % S_T0)
        elif rot == 'xs': a('s_lshr_b32 s%d, s2, 3' % S_T0); a('s_add_u32 s%d, s%d, s2' % (S_T0, S_T0))
        elif rot == 'x6': a('s_lshr_b32 s%d, s2, 1' % S_T0)
        a('s_add_u32 s%d, s%d, s%d' % (S_TMP, S_TMP, S_T0))
        a('s_and_b32 s%d, s%d, 3' % (S_TMP, S_TMP))
    a('s_lshl_b32 s%d, s%d, 6' % (S_TMP, S_TMP))
    a('s_and_b32 s%d, s%d, 3' % (S_T0, S_WAVE))
    a('s_add_u32 s%d, s%d, s%d' % (S_TMP2, S_TMP, S_T0))
    a('s_lshl_b32 s%d, s%d, 18' % (S_KOFF, S_REG))
    a('s_lshl_b32 s%d, s%d, 10' % (S_T0, S_TMP2))
    a('s_add_u32 s%d, s%d, s%d' % (S_KOFF, S_KOFF, S_T0))
    for n in ('qk', 'qv'):
        a('s_mov_b32 s%d, 0x%x' % (SRD[n] + 2, size[n]))
        a('s_mov_b32 s%d, 0x00020000' % (SRD[n] + 3))
    a('s_and_b32 s%d, s%d, 15' % (S_T0, S_REG))
    a('s_lshl_b32 s%d, s%d, 9' % (S_T0, S_T0))
    a('s_lshl_b32 s%d, s%d, 1' % (S_TMP2, S_TMP2))
    a('s_lshl_b32 s%d, s%d, 8' % (S_QOFF, S_HEAD))
    a('s_getpc_b64 s[%d:%d]' % (S_TBL, S_TBL + 1))
    a.label('L_pc')
    a('s_add_u32 s%d, s%d, rope_consts-L_pc' % (S_TBL, S_TBL))
    a('s_addc_u32 s%d, s%d, 0' % (S_TBL + 1, S_TBL + 1))
    a('s_waitcnt lgkmcnt(0)')
    def mksrd(n, full=True):
        a('s_mov_b64 s[%d:%d], s[%d:%d]' % (SRD[n], SRD[n] + 1, karg[n], karg[n] + 1))
        if full:
            a('s_mov_b32 s%d, 0x%x' % (SRD[n] + 2, size[n]))
            a('s_mov_b32 s%d, 0x00020000' % (SRD[n] + 3))
    if pst: a('s_memrealtime s[96:97]')
    mksrd('qk', False); mksrd('qv', False)
    free = list(range(ns))
    where = {}
    nxt = [0]
    def slot_reg(sl): return V_SLOT + 4 * sl
    def issue_next():
        if nxt[0] >= len(seq): return False
        kind, i = seq[nxt[0]]; nxt[0] += 1
        sl = free.pop(0)
        where[(kind, i)] = sl
        if i == 0:
            so = 's%d' % S_KOFF
        else:
            a('s_add_u32 s%d, s%d, %d' % (S_TMP, S_KOFF, i * stepb)); so = 's%d' % S_TMP
        a.vmem('buffer_load_dwordx4 %s, v%d, %s, %s offen %s' % (
            v(slot_reg(sl), 4), V_O16, srd('qk' if kind == 'k' else 'qv'), so, kv_flags), '%s%d' % (kind, i))
        return True
    late = [free.pop(), free.pop(), free.pop()]
    RH, RL, SD = slot_reg(late[0]), slot_reg(late[1]), slot_reg(late[2])
    assert n0 <= ns - 3
    a('s_cmp_ge_u32 s%d, 4' % S_WAVE)
    a('s_cbranch_scc1 L_bar1')
    for _ in range(first):
        issue_next()
    if pst:
        a('s_waitcnt vmcnt(%d)' % (first - 1))
        a('s_memrealtime s[98:99]')
    if touch:
        mksrd('ws'); mksrd('dbg'); mksrd('out')
        a('s_cmp_lg_u32 s%d, %d' % (S_WAVE, touch - 1))
        a('s_cbranch_scc1 L_notouch')
        a('s_lshl_b32 s%d, s%d, 10' % (S_TMP, S_REG))
        a('buffer_load_dword v%d, off, %s, s%d' % (V_S + 4, srd('ws'), S_TMP))
        a('buffer_load_dword v%d, off, %s, 0' % (V_S + 5, srd('dbg')))
        a('buffer_load_dword v%d, off, %s, s%d' % (V_S + 6, srd('out'), S_QOFF))
        a.label('L_notouch')
    a('s_cmp_eq_u32 s%d, 0' % S_WAVE)
    a('s_cselect_b32 s%d, s%d, s%d' % (S_SC, karg['kz'], karg['ks']))
    a('s_cselect_b32 s%d, s%d, s%d' % (S_SC + 1, karg['kz'] + 1, karg['ks'] + 1))
    a('s_cmp_eq_u32 s%d, 2' % S_WAVE)
    a('s_cselect_b32 s%d, s%d, s%d' % (S_SC, karg['vs'], S_SC))
    a('s_cselect_b32 s%d, s%d, s%d' % (S_SC + 1, karg['vs'] + 1, S_SC + 1))
    a('s_cmp_eq_u32 s%d, 3' % S_WAVE)
    a('s_cselect_b32 s%d, s%d, s%d' % (S_SC, karg['vz'], S_SC))
    a('s_cselect_b32 s%d, s%d, s%d' % (S_SC + 1, karg['vz'] + 1, S_SC + 1))
    a('s_mov_b32 s%d, 0x%x' % (S_SC + 2, 1 << 19))
    a('s_mov_b32 s%d, 0x00020000' % (S_SC + 3))
    a('s_lshl_b32 s%d, s%d, 11' % (S_TMP, S_WAVE))
    a('s_mov_b32 m0, s%d' % S_TMP)
    a('s_lshl_b32 s%d, s%d, 11' % (S_TMP, S_REG))
    a.vmem('buffer_load_dwordx4 v%d, %s, s%d offen lds' % (V_O16, s(S_SC, 4), S_TMP), 'su')
    a.vmem('buffer_load_dwordx4 v%d, %s, s%d offen offset:1024 lds' % (V_O16, s(S_SC, 4), S_TMP), 'su')
    QA, QB, CA, SA = V_S, V_S + 1, V_S + 2, V_S + 3
    mksrd('q'); mksrd('qcos'); mksrd('qsin')
    a('s_lshl_b32 s%d, s%d, 6' % (S_TMP, S_WAVE))
    a('v_add_u32 v%d, s%d, v0' % (V_T, S_TMP))
    a('v_lshlrev_b32 v%d, 1, v%d' % (V_T + 1, V_T))
    a('v_xor_b32 v%d, 0x80, v%d' % (V_T + 2, V_T + 1))
    if lean:
        a('s_cmp_ge_u32 s%d, 2' % S_WAVE)
        a('s_cbranch_scc1 L_noqld')
    a.vmem('buffer_load_ushort v%d, v%d, %s, s%d offen' % (QA, V_T + 1, srd('q'), S_QOFF), 'su')
    a.vmem('buffer_load_ushort v%d, v%d, %s, s%d offen' % (QB, V_T + 2, srd('q'), S_QOFF), 'su')
    a.vmem('buffer_load_ushort v%d, v%d, %s, 0 offen' % (CA, V_T + 1, srd('qcos')), 'su')
    a.vmem('buffer_load_ushort v%d, v%d, %s, 0 offen' % (SA, V_T + 1, srd('qsin')), 'su')
    if lean:
        a.label('L_noqld')
        a('s_cmp_lg_u32 s%d, 2' % S_WAVE)
        a('s_cbranch_scc1 L_nocld')
    a.vmem('global_load_dwordx4 %s, v%d, s[%d:%d]' % (v(RH, 4), V_O16, S_TBL, S_TBL + 1), 'su')
    if lean:
        a.label('L_nocld')
    for _ in range(n0 - first):
        issue_next()
    a.wait_vm('su')
    a.vm = ['%s%d' % x for x in seq[:n0]]
    T0, T1, T2, T3 = V_T + 3, V_T + 4, V_T + 5, V_T + 6
    for r in (QA, QB, CA, SA):
        a('v_lshlrev_b32 v%d, 16, v%d' % (r, r))
    a('s_cmp_eq_u32 s%d, 0' % S_WAVE)
    a('s_cselect_b32 s%d, 0x80000000, 0' % S_TMP)
    a('v_mul_f32 v%d, v%d, v%d' % (T0, QA, CA))
    a('v_xor_b32 v%d, s%d, v%d' % (QB, S_TMP, QB))
    a('v_mul_f32 v%d, v%d, v%d' % (T1, QB, SA))
    a('v_cvt_pk_bf16_f32 v%d, v%d, v%d' % (T0, T0, T1))
    a('v_lshlrev_b32 v%d, 16, v%d' % (T1, T0))
    a('v_and_b32 v%d, 0xffff0000, v%d' % (T0, T0))
    a('v_add_f32 v%d, v%d, v%d' % (T0, T0, T1))
    a('v_cvt_pk_bf16_f32 v%d, v%d, v%d' % (T0, T0, T0))
    a('v_lshlrev_b32 v%d, 16, v%d' % (T0, T0))
    a('v_lshlrev_b32 v%d, 2, v%d' % (V_T, V_T))
    a('s_cmp_ge_u32 s%d, 2' % S_WAVE)
    a('s_cbranch_scc1 L_noq')
    a('ds_write_b32 v%d, v%d offset:%d' % (V_T, T0, L_QR))
    a.label('L_noq')
    a('s_cmp_lg_u32 s%d, 2' % S_WAVE)
    a('s_cbranch_scc1 L_noc')
    a('ds_write_b128 v%d, %s offset:%d' % (V_O16, v(RH, 4), L_CT))
    a.label('L_noc')
    a('s_waitcnt lgkmcnt(0)')
    a.label('L_bar1')
    if pst: a('s_memrealtime s[6:7]')
    a('s_barrier')
    if early:
        assert not orderb
        a('s_cmp_lt_u32 s%d, 4' % S_WAVE)
        a('s_cbranch_scc1 L_issued0')
        for kind, i in seq[:n0]:
            if i == 0:
                so = 's%d' % S_KOFF
            else:
                a('s_add_u32 s%d, s%d, %d' % (S_TMP, S_KOFF, i * stepb)); so = 's%d' % S_TMP
            a('buffer_load_dwordx4 %s, v%d, %s, %s offen %s' % (
                v(slot_reg(where[(kind, i)]), 4), V_O16, srd('qk' if kind == 'k' else 'qv'), so, kv_flags))
        a.label('L_issued0')
    for n in ('out', 'ws', 'dbg'):
        mksrd(n)
    for r, val in ((S_M1, 0xcccccccc), (S_M0, 0xaaaaaaaa)):
        a('s_mov_b32 s%d, 0x%x' % (r, val)); a('s_mov_b32 s%d, 0x%x' % (r + 1, val))
    a('s_mov_b32 s%d, 0x%08x' % (S_C, f2u((128.0 ** -0.5) * math.log2(math.e))))
    if proto == 'loc':
        a('s_cmp_lg_u32 s%d, 1' % S_WAVE)
        a('s_cbranch_scc1 L_nopub')
        a('s_getreg_b32 s%d, hwreg(HW_REG_XCC_ID, 0, 4)' % S_TMP)
        a('s_cmp_gt_u32 s%d, 7' % S_TMP)
        a('s_cbranch_scc1 L_nopub')
        a('s_mul_i32 s%d, s%d, 5' % (S_TMP, S_TMP))
        a('s_lshl_b64 s[96:97], 1, s%d' % S_TMP)
        a('s_mov_b64 exec, 1')
        a('v_mov_b32 v%d, s96' % V_S)
        a('v_mov_b32 v%d, s97' % (V_S + 1))
        a('s_lshl_b32 s%d, s%d, 4' % (S_TMP, S_HEAD))
        a('buffer_atomic_add_x2 %s, off, %s, s%d offset:8 sc1' % (v(V_S, 2), srd('dbg'), S_TMP))
        a('s_mov_b64 exec, -1')
        a.label('L_nopub')
    QRA, QRB = V_W[1], V_O
    a('v_and_b32 v%d, 31, v0' % V_T)
    a('v_lshlrev_b32 v%d, 4, v%d' % (V_T, V_T))
    a('v_xor_b32 v%d, 0x100, v%d' % (V_T + 1, V_T))
    a('v_and_b32 v%d, 15, v0' % (V_T + 2))
    a('v_lshlrev_b32 v%d, 4, v%d' % (V_T + 3, V_T + 2))
    a('ds_read_b128 %s, v%d offset:%d' % (v(QRA, 4), V_T, L_QR))
    a('ds_read_b128 %s, v%d offset:%d' % (v(QRB, 4), V_T + 1, L_QR))
    a('ds_read_b128 %s, v%d offset:%d' % (v(RH, 4), V_T + 3, L_CT))
    a('ds_read_b128 %s, v%d offset:%d' % (v(RL, 4), V_T + 3, L_CT + 256))
    a('ds_read_b128 %s, v%d offset:%d' % (v(V_C2, 4), V_T + 3, L_CT + 512))
    a('ds_read_b128 %s, v%d offset:%d' % (v(SD, 4), V_T + 3, L_CT + 768))
    a('v_lshlrev_b32 v%d, 5, v%d' % (V_T + 2, V_T + 2))
    a('v_lshrrev_b32 v%d, 4, v0' % (V_T + 4))
    a('v_lshl_add_u32 v%d, v%d, 1, v%d' % (V_T + 2, V_T + 4, V_T + 2))
    a('s_lshl_b32 s%d, s%d, 2' % (S_TMP, S_TMP2))
    a('v_add_u32 v%d, s%d, v%d' % (V_T + 2, S_TMP, V_T + 2))
    for k, r in enumerate((V_KZ, V_KS, V_VS, V_VZ)):
        a('ds_read_u16 v%d, v%d offset:%d' % (r, V_T + 2, L_SC + 2048 * k))
    SM, SN, TF = V_T + 4, V_T + 5, V_T + 6
    a('v_and_b32 v%d, 16, v0' % SM)
    a('v_lshlrev_b32 v%d, 27, v%d' % (SN, SM))
    a('v_lshrrev_b32 v%d, 5, v0' % TF)
    a('s_add_u32 s%d, s%d, s%d' % (S_TMP, S_T0, S_TMP2))
    a('v_add_u32 v%d, s%d, v%d' % (TF, S_TMP, TF))
    a('v_cvt_f32_u32 v%d, v%d' % (TF, TF))
    a('s_waitcnt lgkmcnt(0)')
    for j in range(4): a('v_xor_b32 v%d, v%d, v%d' % (QRB + j, SN, QRB + j))
    for r in (V_KZ, V_KS, V_VS, V_VZ): a('v_lshlrev_b32 v%d, 16, v%d' % (r, r))
    for j in range(4): a('v_mul_f32 v%d, v%d, v%d' % (RH + j, TF, RH + j))
    for j in range(4): a('v_fract_f32 v%d, v%d' % (RH + j, RH + j))
    for j in range(4): a('v_fmac_f32 v%d, v%d, v%d' % (RH + j, TF, RL + j))
    for j in range(4): a('v_sin_f32 v%d, v%d' % (RL + j, RH + j))
    for j in range(4): a('v_cos_f32 v%d, v%d' % (RH + j, RH + j))
    W0, W1 = V_W
    a('s_nop 0')
    for j in range(4): a('v_mul_f32 v%d, v%d, v%d' % (W0 + j, QRA + j, RH + j))
    for j in range(4): a('v_fmac_f32 v%d, v%d, v%d' % (W0 + j, QRB + j, RL + j))
    for j in range(4): a('v_mul_f32 v%d, v%d, v%d' % (V_S + j, QRB + j, RH + j))
    for j in range(4): a('v_fma_f32 v%d, -v%d, v%d, v%d' % (V_S + j, QRA + j, RL + j, V_S + j))
    for j in range(4): a('v_mul_f32 v%d, v%d, v%d' % (W1 + j, V_C2 + j, W0 + j))
    for j in range(4): a('v_mul_f32 v%d, v%d, v%d' % (V_S + j, SD + j, V_S + j))
    for j in range(4): a('v_fma_f32 v%d, v%d, 0.5, -v%d' % (W1 + j, W1 + j, V_S + j))
    def main_body(tag, seq_, pre_issued):
        nonlocal seq, free, where
        if not pre_issued:
            seq = seq_; free = list(range(ns)); where = {}; nxt[0] = 0; a.vm = []
            while free:
                if not issue_next(): break
        else:
            if not early:
                a('s_cmp_lt_u32 s%d, 4' % S_WAVE)
                a('s_cbranch_scc1 L_issued')
            for kind, i in (seq[:n0] if not early else []):
                if i == 0:
                    so = 's%d' % S_KOFF
                else:
                    a('s_add_u32 s%d, s%d, %d' % (S_TMP, S_KOFF, i * stepb)); so = 's%d' % S_TMP
                a('buffer_load_dwordx4 %s, v%d, %s, %s offen %s' % (
                    v(slot_reg(where[(kind, i)]), 4), V_O16, srd('qk' if kind == 'k' else 'qv'), so, kv_flags))
            if not early: a.label('L_issued')
            for sl in late: free.append(sl)
            while free:
                if not issue_next(): break
        if prog and not pre_issued:
            a('s_barrier')
        for i in range(16):
            K = slot_reg(where[('k', i)])
            cur, prev = V_W[i & 1], V_W[(i + 1) & 1]
            dpp('v_mov_b32_dpp', V_B, V_KZ, None, 'row_newbcast:%d' % i)
            if i >= 8:
                dpp('v_add_f32_dpp', V_S + i - 8, V_S + i - 8, V_S + i - 8, 'row_mirror', 0x3)
            a.wait_vm_if('k%d' % i)
            if i == 0: stamp(1)
            for j in range(4): a('v_cvt_f32_i32 v%d, v%d' % (K + j, K + j))
            for j in range(4): a('v_sub_f32 v%d, v%d, v%d' % (K + j, K + j, V_B))
            D = V_S + i if i < 8 else V_TT
            a('v_mul_f32 v%d, v%d, v%d' % (D, K, cur))
            for j in range(1, 4): a('v_fmac_f32 v%d, v%d, v%d' % (D, K + j, cur + j))
            free.append(where[('k', i)])
            issue_next()
            if i < 15:
                for j in range(4):
                    a('v_fma_f32 v%d, v%d, v%d, -v%d' % (prev + j, V_C2 + j, cur + j, prev + j))
            else:
                a('s_nop 1')
            if i >= 8:
                dpp('v_add_f32_dpp', V_S + i - 8, V_TT, V_TT, 'row_mirror', 0xc)
        while free:
            if not issue_next(): break
        assert nxt[0] == len(seq)
        stamp(2)
        a('s_nop 1')
        for i in range(4): dpp('v_add_f32_dpp', V_S + i, V_S + i, V_S + i, 'row_half_mirror', 0x5)
        for i in range(4): dpp('v_add_f32_dpp', V_S + i, V_S + 4 + i, V_S + 4 + i, 'row_half_mirror', 0xa)
        for i in range(4): dpp('v_add_f32_dpp', V_S + 4 + i, V_S + i, V_S + i, 'quad_perm:[2,3,0,1]')
        a('v_cndmask_b32 v%d, v%d, v%d, s[%d:%d]' % (V_S, V_S + 4, V_S + 6, S_M1, S_M1 + 1))
        a('v_cndmask_b32 v%d, v%d, v%d, s[%d:%d]' % (V_S + 1, V_S + 5, V_S + 7, S_M1, S_M1 + 1))
        a('s_nop 0')
        dpp('v_add_f32_dpp', V_S + 2, V_S, V_S, 'quad_perm:[1,0,3,2]')
        dpp('v_add_f32_dpp', V_S + 3, V_S + 1, V_S + 1, 'quad_perm:[1,0,3,2]')
        a('v_cndmask_b32 v%d, v%d, v%d, s[%d:%d]' % (V_S, V_S + 2, V_S + 3, S_M0, S_M0 + 1))
        LG, X, Y = V_S, V_S + 1, V_S + 2
        a('v_mul_f32 v%d, v%d, v%d' % (LG, LG, V_KS))
        a('v_mov_b32 v%d, v%d' % (X, LG))
        a('s_nop 1')
        a('v_permlane16_swap_b32 v%d, v%d' % (LG, X))
        a('v_add_f32 v%d, v%d, v%d' % (LG, LG, X))
        a('v_mul_f32 v%d, s%d, v%d' % (LG, S_C, LG))
        a('s_nop 1')
        dpp('v_max_f32_dpp', X, LG, LG, 'row_ror:8')
        for n in (4, 2, 1):
            a('s_nop 1')
            dpp('v_max_f32_dpp', X, X, X, 'row_ror:%d' % n)
        a('v_mov_b32 v%d, v%d' % (Y, X))
        a('s_nop 1')
        a('v_permlane32_swap_b32 v%d, v%d' % (X, Y))
        VM = V_S + 3
        a('v_max_f32 v%d, v%d, v%d' % (VM, X, Y))
        PP, AA, AZ, VL = V_S + 4, V_S + 5, V_S + 6, V_S + 7
        a('v_sub_f32 v%d, v%d, v%d' % (PP, LG, VM))
        a('v_exp_f32 v%d, v%d' % (PP, PP))
        a('s_nop 0')
        a('v_mul_f32 v%d, v%d, v%d' % (AA, PP, V_VS))
        a('v_mul_f32 v%d, v%d, v%d' % (AZ, AA, V_VZ))
        a('s_nop 0')
        for n in (8, 4, 2, 1):
            dpp('v_add_f32_dpp', PP, PP, PP, 'row_ror:%d' % n)
            dpp('v_add_f32_dpp', AZ, AZ, AZ, 'row_ror:%d' % n)
            a('s_nop 0')
        for j in range(4): a('v_sub_f32 v%d, 0, v%d' % (V_O + j, AZ))
        a('v_mov_b32 v%d, v%d' % (VL, PP))
        a('s_nop 1')
        a('v_permlane32_swap_b32 v%d, v%d' % (PP, VL))
        a('v_add_f32 v%d, v%d, v%d' % (VL, VL, PP))
        for i in range(16):
            R = slot_reg(where[('v', i)])
            dpp('v_mov_b32_dpp', V_B, AA, None, 'row_newbcast:%d' % i)
            a.wait_vm_if('v%d' % i)
            for j in range(4): a('v_cvt_f32_i32 v%d, v%d' % (R + j, R + j))
            for j in range(4): a('v_fmac_f32 v%d, v%d, v%d' % (V_O + j, V_B, R + j))
        stamp(3)
    if orderb:
        a('s_cmp_ge_u32 s%d, 12' % S_WAVE)
        a('s_cbranch_scc1 L_bodyb')
    main_body('a', seq, True)
    VL, VM = V_S + 7, V_S + 3
    if orderb:
        a('s_branch L_rec')
        a.label('L_bodyb')
        main_body('b', make_order(orderb), False)
        a.label('L_rec')
    a('s_nop 1')
    a('v_permlane32_swap_b32 v%d, v%d' % (V_O, V_O + 2))
    a('v_permlane32_swap_b32 v%d, v%d' % (V_O + 1, V_O + 3))
    E = V_T + 3
    a('s_lshl_b32 s%d, s%d, 10' % (S_TMP, S_WAVE))
    a('v_add_f32 v%d, v%d, v%d' % (E, V_O, V_O + 2))
    a('v_add_f32 v%d, v%d, v%d' % (E + 1, V_O + 1, V_O + 3))
    a('v_mov_b32 v%d, v%d' % (E + 2, VL))
    a('v_mov_b32 v%d, v%d' % (E + 3, VM))
    a('v_add_u32 v%d, s%d, v%d' % (V_T, S_TMP, V_O16))
    a('ds_write_b128 v%d, %s offset:%d' % (V_T, v(E, 4), L_REC))
    a('s_waitcnt lgkmcnt(0)')
    if prog:
        a('s_cmp_ge_u32 s%d, 12' % S_WAVE)
        a('s_cbranch_scc1 L_nob15')
        a('s_barrier')
        a.label('L_nob15')
    if wst:
        a('s_lshl_b32 s13, s2, 4')
        a('s_add_u32 s13, s13, s%d' % S_WAVE)
        a('s_lshl_b32 s13, s13, 4')
        a('s_add_u32 s13, s13, 0x100000')
        a('s_mov_b64 exec, 1')
        for k, r in enumerate((100, 24, 26, 28)):
            a('v_mov_b32 v%d, s%d' % (V_T + 1, r))
            a('buffer_store_dword v%d, off, %s, s13 offset:%d' % (V_T + 1, srd('ws'), 4 * k))
            a('s_nop 1')
        a('s_mov_b64 exec, -1')
    if proto == 'loc':
        a('s_cmp_lg_u32 s%d, %d' % (S_WAVE, chk))
        a('s_cbranch_scc1 L_nochk')
        a('s_lshl_b32 s%d, s%d, 4' % (S_TMP, S_HEAD))
        a('buffer_load_dwordx2 %s, off, %s, s%d offset:8 sc1' % (v(V_SLOT, 2), srd('dbg'), S_TMP))
        a('s_getreg_b32 s%d, hwreg(HW_REG_XCC_ID, 0, 4)' % S_TMP2)
        a('s_min_u32 s%d, s%d, 8' % (S_TMP2, S_TMP2))
        a('s_mul_i32 s%d, s%d, 5' % (S_TMP2, S_TMP2))
        a('s_waitcnt vmcnt(0)')
        a('v_readfirstlane_b32 s96, v%d' % V_SLOT)
        a('v_readfirstlane_b32 s97, v%d' % (V_SLOT + 1))
        a('v_mov_b32 v%d, %d' % (V_T, L_FLAG))
        a('s_nop 2')
        a('s_lshr_b64 s[96:97], s[96:97], s%d' % S_TMP2)
        a('s_and_b32 s96, s96, 31')
        a('v_mov_b32 v%d, s96' % V_B)
        a('ds_write_b32 v%d, v%d' % (V_T, V_B))
        a('s_waitcnt lgkmcnt(0)')
        a.label('L_nochk')
    if probe:
        a('s_cmp_lg_u32 s%d, 1' % S_WAVE)
        a('s_cbranch_scc1 L_noprobe')
        for j in range(4): a('v_mov_b32 v%d, -1' % (V_SLOT + j))
        a('s_lshl_b32 s%d, s%d, 10' % (S_TMP, S_REG))
        a('s_add_u32 s%d, s%d, 0x80000' % (S_TMP, S_TMP))
        if probe == 'st1':  a('buffer_store_dwordx4 %s, v%d, %s, s%d offen sc1' % (v(V_SLOT, 4), V_O16, srd('ws'), S_TMP))
        if probe == 'st0':  a('buffer_store_dwordx4 %s, v%d, %s, s%d offen' % (v(V_SLOT, 4), V_O16, srd('ws'), S_TMP))
        if probe == 'stnt': a('buffer_store_dwordx4 %s, v%d, %s, s%d offen nt' % (v(V_SLOT, 4), V_O16, srd('ws'), S_TMP))
        if probe == 'ld1':  a('buffer_load_dwordx4 %s, v%d, %s, s%d offen sc1' % (v(V_SLOT, 4), V_O16, srd('ws'), S_TMP))
        if probe == 'at':
            a('s_mov_b64 exec, 1')
            a('s_lshl_b32 s%d, s%d, 4' % (S_TMP, S_HEAD))
            a('buffer_atomic_add v%d, off, %s, s%d offset:8 sc1' % (V_SLOT, srd('dbg'), S_TMP))
            a('s_mov_b64 exec, -1')
        a('s_waitcnt vmcnt(0)')
        a.label('L_noprobe')
    if proto == 'tag':
        a('s_cmp_lg_u32 s%d, 1' % S_WAVE)
        a('s_cbranch_scc1 L_noclr')
        for j in range(4): a('v_mov_b32 v%d, -1' % (V_SLOT + j))
        a('s_lshl_b32 s%d, s%d, 10' % (S_TMP, S_REG))
        a('buffer_store_dwordx4 %s, v%d, %s, s%d offen sc1' % (v(V_SLOT, 4), V_O16, srd('ws'), S_TMP))
        a('s_waitcnt vmcnt(0)')
        a.label('L_noclr')
    if proto == 'spec':
        a('s_cmp_lg_u32 s%d, 1' % S_WAVE)
        a('s_cbranch_scc1 L_noclr')
        for j in range(4): a('v_mov_b32 v%d, -1' % (V_SLOT + j))
        a('s_lshl_b32 s%d, s%d, 10' % (S_TMP, S_REG))
        a('buffer_store_dwordx4 %s, v%d, %s, s%d offen sc1' % (v(V_SLOT, 4), V_O16, srd('ws'), S_TMP))
        a('s_waitcnt vmcnt(0)')
        a('s_mov_b64 exec, 1')
        a('v_mov_b32 v%d, 1' % V_B)
        a('s_lshl_b32 s%d, s%d, 4' % (S_TMP, S_HEAD))
        a('buffer_atomic_add v%d, off, %s, s%d offset:8 sc1' % (V_B, srd('dbg'), S_TMP))
        a('s_mov_b64 exec, -1')
        a.label('L_noclr')
        a('s_cmp_lg_u32 s%d, 8' % S_WAVE)
        a('s_cbranch_scc1 L_nochk')
        a('s_lshl_b32 s%d, s%d, 4' % (S_TMP, S_HEAD))
        a('buffer_load_dword v%d, off, %s, s%d offset:8 sc1' % (V_B, srd('dbg'), S_TMP))
        a('v_mov_b32 v%d, %d' % (V_T, L_FLAG))
        a('s_waitcnt vmcnt(0)')
        a('ds_write_b32 v%d, v%d' % (V_T, V_B))
        a('s_waitcnt lgkmcnt(0)')
        a.label('L_nochk')
    a('s_cmp_lg_u32 s%d, 0' % S_WAVE)
    a('s_cbranch_scc1 L_others')
    LM = V_S
    R = lambda i: V_SLOT + 2 * i
    V_C1K, V_O8, V_OUT = V_T, V_T + 1, V_T + 2
    a('v_and_b32 v%d, 15, v0' % V_C1K)
    a('v_lshlrev_b32 v%d, 10, v%d' % (V_C1K, V_C1K))
    a('v_lshlrev_b32 v%d, 3, v0' % V_O8)
    a('v_and_b32 v%d, 31, v0' % V_OUT)
    a('v_lshlrev_b32 v%d, 3, v%d' % (V_OUT, V_OUT))
    a('v_lshrrev_b32 v%d, 5, v0' % V_B)
    a('v_lshl_add_u32 v%d, v%d, 2, v%d' % (V_OUT, V_B, V_OUT))
    def combine():
        F, M_ = V_S + 2, E + 3
        dpp('v_max_f32_dpp', M_, LM + 1, LM + 1, 'row_ror:8')
        for n in (4, 2, 1):
            a('s_nop 1')
            dpp('v_max_f32_dpp', M_, M_, M_, 'row_ror:%d' % n)
        a('v_sub_f32 v%d, v%d, v%d' % (F, LM + 1, M_))
        a('v_exp_f32 v%d, v%d' % (F, F))
        a('s_nop 0')
        a('v_mul_f32 v%d, v%d, v%d' % (E + 2, LM, F))
        a('v_mov_b32 v%d, 0' % E)
        a('v_mov_b32 v%d, 0' % (E + 1))
    def combine2(waitfn):
        F = V_S + 2
        for i in range(16):
            waitfn(i)
            dpp('v_fmac_f32_dpp', E, F, R(i), 'row_newbcast:%d' % i)
            dpp('v_fmac_f32_dpp', E + 1, F, R(i) + 1, 'row_newbcast:%d' % i)
            if i in (0, 2, 4, 6):
                dpp('v_add_f32_dpp', E + 2, E + 2, E + 2, 'row_ror:%d' % (8 >> (i // 2)))
    if prog:
        a('ds_read_b64 %s, v%d offset:%d' % (v(LM, 2), V_C1K, L_REC + 8))
        for w in range(12):
            a('ds_read_b64 %s, v%d offset:%d' % (v(R(w), 2), V_O16, L_REC + 1024 * w))
        a('s_mov_b32 s96, 0xf000f000'); a('s_mov_b32 s97, 0xf000f000')
        a('v_mov_b32 v%d, 0xff800000' % V_B)
        a('s_waitcnt lgkmcnt(12)')
        a('v_cndmask_b32 v%d, v%d, v%d, s[96:97]' % (LM + 1, LM + 1, V_B))
        a('v_mov_b32 v%d, 0' % V_B)
        a('v_cndmask_b32 v%d, v%d, v%d, s[96:97]' % (LM, LM, V_B))
        a('s_nop 0')
        combine()
        F = V_S + 2
        for i in range(12):
            a('s_waitcnt lgkmcnt(%d)' % (11 - i))
            dpp('v_fmac_f32_dpp', E, F, R(i), 'row_newbcast:%d' % i)
            dpp('v_fmac_f32_dpp', E + 1, F, R(i) + 1, 'row_newbcast:%d' % i)
            if i in (0, 2, 4, 6):
                dpp('v_add_f32_dpp', E + 2, E + 2, E + 2, 'row_ror:%d' % (8 >> (i // 2)))
        a('s_barrier')
        stamp(4)
        if stamps: a('s_waitcnt lgkmcnt(0)')
        Q = lambda w: V_SLOT + 4 * w
        for w in range(4):
            a('ds_read_b128 %s, v%d offset:%d' % (v(Q(w), 4), V_O16, L_REC + 1024 * (12 + w)))
        MX = V_S
        a('s_waitcnt lgkmcnt(2)')
        a('v_max3_f32 v%d, v%d, v%d, v%d' % (MX, E + 3, Q(0) + 3, Q(1) + 3))
        a('s_waitcnt lgkmcnt(0)')
        a('v_max3_f32 v%d, v%d, v%d, v%d' % (MX, MX, Q(2) + 3, Q(3) + 3))
        a('v_sub_f32 v%d, v%d, v%d' % (E + 3, E + 3, MX))
        for w in range(4): a('v_sub_f32 v%d, v%d, v%d' % (Q(w) + 3, Q(w) + 3, MX))
        a('v_exp_f32 v%d, v%d' % (E + 3, E + 3))
        for w in range(4): a('v_exp_f32 v%d, v%d' % (Q(w) + 3, Q(w) + 3))
        for j in range(3): a('v_mul_f32 v%d, v%d, v%d' % (E + j, E + j, E + 3))
        for w in range(4):
            for j in range(3): a('v_fmac_f32 v%d, v%d, v%d' % (E + j, Q(w) + j, Q(w) + 3))
        a('v_mov_b32 v%d, v%d' % (E + 3, MX))
    else:
        a('s_barrier')
        stamp(4)
        if stamps: a('s_waitcnt lgkmcnt(0)')
        if proto in ('spec', 'loc'):
            a('v_mov_b32 v%d, %d' % (V_B, L_FLAG))
            a('ds_read_b32 v%d, v%d' % (V_B, V_B))
        a('ds_read_b64 %s, v%d offset:%d' % (v(LM, 2), V_C1K, L_REC + 8))
        for w in range(16):
            a('ds_read_b64 %s, v%d offset:%d' % (v(R(w), 2), V_O16, L_REC + 1024 * w))
        a('s_waitcnt lgkmcnt(15)')
        combine()
        combine2(lambda i: a('s_waitcnt lgkmcnt(%d)' % (15 - i)))
    if proto in ('spec', 'loc'):
        a('v_readfirstlane_b32 s%d, v%d' % (S_SPEC, V_B))
    stamp(5)
    def rec_loads(flags):
        a('buffer_load_dwordx2 %s, v%d, %s, s%d offen offset:%d %s' % (v(LM, 2), V_C1K, srd('ws'), S_REG, 512 if compact else 8, flags))
        for i in range(16):
            if i % 4 == 0: a('s_add_u32 s%d, s%d, %d' % (S_TMP, S_REG, (i // 4) * 4096))
            a('buffer_load_dwordx2 %s, v%d, %s, s%d offen offset:%d %s' % (v(R(i), 2), V_O8 if compact else V_O16, srd('ws'), S_TMP, (i % 4) * 1024, flags))
    a('s_lshl_b32 s%d, s%d, 10' % (S_TMP, S_REG))
    if proto == 'loc':
        a('s_nop 1')
        a('s_cmp_eq_u32 s%d, 16' % S_SPEC)
        a('s_cbranch_scc1 L_stloc')
        a('buffer_store_dwordx4 %s, v%d, %s, s%d offen sc1' % (v(E, 4), V_O16, srd('ws'), S_TMP))
        a('s_branch L_stdone')
        a.label('L_stloc')
        a('buffer_store_dwordx4 %s, v%d, %s, s%d offen' % (v(E, 4), V_O16, srd('ws'), S_TMP))
        a.label('L_stdone')
    elif compact:
        a('buffer_store_dwordx2 %s, v%d, %s, s%d offen sc1' % (v(E, 2), V_O8, srd('ws'), S_TMP))
        a('s_mov_b64 exec, 0xffff')
        a('buffer_store_dwordx2 %s, v%d, %s, s%d offen offset:512 sc1' % (v(E + 2, 2), V_O8, srd('ws'), S_TMP))
    else:
        a('buffer_store_dwordx4 %s, v%d, %s, s%d offen sc1' % (v(E, 4), V_O16, srd('ws'), S_TMP))
    a('s_mov_b64 exec, 1')
    if proto in ('ack', 'loc'):
        a('s_waitcnt vmcnt(0)')
    stamp(6)
    a('v_mov_b32 v%d, 1' % V_B)
    a('s_lshl_b32 s%d, s%d, 4' % (S_TMP, S_HEAD))
    a('buffer_atomic_add v%d, off, %s, s%d sc0 sc1' % (V_B, srd('dbg'), S_TMP))
    a('s_mov_b64 exec, -1')
    a('s_lshl_b32 s%d, s%d, 14' % (S_REG, S_HEAD))
    if proto in ('spec', 'tag'):
        if proto == 'spec':
            a('s_cmp_lg_u32 s%d, 16' % S_SPEC)
            a('s_cbranch_scc1 L_nospec')
            rec_loads('sc1')
            a('s_waitcnt vmcnt(0)')
            a('v_readfirstlane_b32 s%d, v%d' % (S_TMP2, V_B))
            stamp(7)
            a('s_nop 3')
            a('s_cmp_lg_u32 s%d, 15' % S_TMP2)
            a('s_cbranch_scc1 L_notlast' if stamps else 's_cbranch_scc1 L_end')
            a('s_movk_i32 s%d, 0x7fff' % S_SPEC)
            a('s_branch L_check')
            a.label('L_nospec')
        a('s_waitcnt vmcnt(0)')
        a('v_readfirstlane_b32 s%d, v%d' % (S_TMP2, V_B))
        if proto == 'tag': stamp(7)
        a('s_nop 3')
        a('s_cmp_lg_u32 s%d, 15' % S_TMP2)
        a('s_cbranch_scc1 L_notlast' if stamps else 's_cbranch_scc1 L_end')
        a('s_movk_i32 s%d, 0x7fff' % S_SPEC)
        a.label('L_reload')
        rec_loads('sc1')
        a('s_waitcnt vmcnt(0)')
        a.label('L_check')
        X0 = V_B
        a('v_max3_u32 v%d, v%d, v%d, v%d' % (X0, LM, LM + 1, R(0)))
        regs = [R(0) + 1] + [R(i) + k for i in range(1, 16) for k in range(2)]
        regs = regs
        while len(regs) >= 2:
            a('v_max3_u32 v%d, v%d, v%d, v%d' % (X0, X0, regs[0], regs[1])); regs = regs[2:]
        if regs: a('v_max_u32 v%d, v%d, v%d' % (X0, X0, regs[0]))
        a('v_cmp_eq_u32 vcc, -1, v%d' % X0)
        a('s_sub_u32 s%d, s%d, 1' % (S_SPEC, S_SPEC))
        a('s_cbranch_scc1 L_end')
        a('s_cbranch_vccnz L_reload')
        stamp(8)
        combine()
        combine2(lambda i: a('s_nop 0'))
    else:
        a('s_waitcnt vmcnt(0)')
        a('v_readfirstlane_b32 s%d, v%d' % (S_TMP2, V_B))
        stamp(7)
        a('s_nop 3')
        a('s_cmp_lg_u32 s%d, 15' % S_TMP2)
        a('s_cbranch_scc1 L_notlast' if stamps else 's_cbranch_scc1 L_end')
        if proto == 'loc' and ldloc:
            a('s_cmp_eq_u32 s%d, 16' % S_SPEC)
            a('s_cbranch_scc1 L_ldloc')
            rec_loads('sc1')
            a('s_branch L_lddone')
            a.label('L_ldloc')
            rec_loads('')
            a.label('L_lddone')
        else:
            rec_loads('sc1')
        a('s_waitcnt vmcnt(16)')
        stamp(8)
        combine()
        combine2(lambda i: a('s_waitcnt vmcnt(%d)' % (15 - i)))
    stamp(9)
    a('v_rcp_f32 v%d, v%d' % (E + 2, E + 2))
    a('s_nop 0')
    a('v_mul_f32 v%d, v%d, v%d' % (E, E, E + 2))
    a('v_mul_f32 v%d, v%d, v%d' % (E + 1, E + 1, E + 2))
    a('v_cvt_pk_bf16_f32 v%d, v%d, v%d' % (E, E, E + 1))
    a('buffer_store_dword v%d, v%d, %s, s%d offen %s' % (E, V_OUT, srd('out'), S_QOFF, outflags))
    if enc:
        a('s_waitcnt vmcnt(0)')
        a('s_memrealtime s[24:25]')
        a('s_waitcnt lgkmcnt(0)')
        a('s_sub_u32 s26, s24, s100')
        a('s_mul_i32 s26, s26, %d' % enc)
        a.label('L_spin')
        a('s_memrealtime s[28:29]')
        a('s_waitcnt lgkmcnt(0)')
        a('s_sub_u32 s27, s28, s24')
        a('s_cmp_lt_u32 s27, s26')
        a('s_cbranch_scc1 L_spin')
    if stamps:
        a('s_waitcnt vmcnt(0)')
        stamp(10)
        flush_stamps(10)
        a('s_endpgm')
        a.label('L_notlast')
        flush_stamps(7)
    a('s_endpgm')
    a.label('L_others')
    a('s_barrier')
    a.label('L_end')
    a('s_endpgm')
    rh, rl, c2, sd = rope_tables(8)
    a.lines.append('.p2align 6')
    a.lines.append('.type rope_consts,@object')
    a.lines.append('rope_consts:')
    for tab in (rh, rl, c2, sd):
        for b in range(0, 64, 8):
            a.lines.append('    .long ' + ', '.join('0x%08x' % x for x in tab[b:b + 8]))
    a.lines.append('.size rope_consts, 1024')
    launch = '; @launch grid=(256,1,1) block=(1024,1,1) lds=%d' % LDS
    notes = '''; Single-query attention over a quantised KV cache, split over 256 workgroups (16 heads x 16 ranges of 512 tokens).
; * each wave handles 32 tokens: dequantise K, dot with the position-rotated query, softmax with the true wave maximum,
;   cos / sin(t * 10000^(-f/64)); they are regenerated from the 64 inverse frequencies (table rope_consts at the end
'''
    return wrap(a.text(), launch, NV, notes=notes)

if __name__ == '__main__':
    kw = {}
    for arg in sys.argv[2:]:
        k, val = arg.split('=')
        kw[k] = int(val) if val.lstrip('-').isdigit() else val
    open(sys.argv[1], 'w').write(gen(**kw))
```

```python
import sys, math
from asmlib import *
from consts import rope_tables, f2u

OOB = 0x7c000000

def gen(kv_flags='nt', le=6, lo=10, first=3, stamps=0, lds=90112, boost=0, nch=4, parity=1, rot='', ring=16, pre=16):
    a = Asm()
    S_WAVE, S_CUR, S_NXT, S_IT = 3, 4, 5, 6
    S_TBL = 8
    S_QOFF, S_HEAD, S_TMP, S_T0, S_TMP2, S_REG = 10, 11, 12, 13, 14, 15
    SRD = dict(qk=44, qv=48, q=68, qcos=72, qsin=76, out=80, ws=84, dbg=88)
    karg = dict(q=16, qk=18, ks=20, kz=22, qv=24, vs=26, vz=28, qcos=30, qsin=32, out=38, dbg=40, ws=42)
    size = dict(qk=1 << 26, qv=1 << 26, q=4096, qcos=256, qsin=256, out=4096, ws=1 << 21, dbg=256)
    S_M1, S_M0, S_C, S_OOB = 16, 18, 22, 23
    S_SC = 92
    def srd(n): return s(SRD[n], 4)
    V_O16, V_SCA = 1, 2
    V_KZ, V_KS, V_VS, V_VZ, V_B = 3, 4, 5, 6, 7
    V_W = [8, 12]; V_C2 = 16; V_O = 20
    V_S = 24; V_TT = 32
    V_T = 33
    V_M, V_L, V_KZN = 40, 41, 42
    V_X = 44
    V_QA, V_QB, V_TI, V_SCB = 60, 64, 68, 69
    V_A, V_SN = 72, 76
    V_SLOT = 80 if rot else 60
    S_CC, S_BASE = 7, 96
    NV = V_SLOT + 4 * ring
    def slot(x): return V_SLOT + 4 * (x % ring)
    assert max(le, lo) + boost < ring and pre <= ring and pre >= max(le, lo)
    L_SC, L_QR, L_CT, L_REC = 0, 8192, 8704, 10240
    STEPB = 4096; CHUNKB = 16 * STEPB
    NST = 12
    def stamp(k):
        if stamps:
            r = 100 if k == 0 else 24 + 2 * (k - 1)
            a('s_memrealtime s[%d:%d]' % (r, r + 1))
    def flush_stamps(k_last):
        if not stamps: return
        a('s_waitcnt lgkmcnt(0)')
        a('s_mul_i32 s13, s2, %d' % (NST * 4))
        a('s_add_u32 s13, s13, 0x100000')
        a('s_mov_b64 exec, 1')
        a('s_getreg_b32 s8, hwreg(HW_REG_XCC_ID)')
        for k in range(NST):
            k2 = min(k, k_last)
            r = 100 if k2 == 0 else 24 + 2 * (k2 - 1)
            if k == NST - 1: r = 8
            a('v_mov_b32 v%d, s%d' % (V_T + 6, r))
            a('buffer_store_dword v%d, off, %s, s13 offset:%d' % (V_T + 6, srd('ws'), 4 * k))
            a('s_nop 1')
        a('s_mov_b64 exec, -1')
    def dpp(op, d, s0, s1, ctrl, bank=0xf):
        if s1 is None: a('%s v%d, v%d %s row_mask:0xf bank_mask:0x%x' % (op, d, s0, ctrl, bank))
        else: a('%s v%d, v%d, v%d %s row_mask:0xf bank_mask:0x%x' % (op, d, s0, s1, ctrl, bank))
    def big(x, base):
        i = x % 16
        if i == 0:
            so = 's%d' % base
        else:
            a('s_add_u32 s%d, s%d, %d' % (S_TMP, base, i * STEPB)); so = 's%d' % S_TMP
        a('buffer_load_dwordx4 %s, v%d, %s, %s offen %s' % (v(slot(x), 4), V_O16, srd('qk' if x < 16 else 'qv'), so, kv_flags))

    a('s_cmp_ge_u32 s2, 256')
    a('s_cbranch_scc1 L_end')
    stamp(0)
    a('s_load_dwordx16 s[16:31], s[0:1], 0')
    a('s_load_dwordx8 s[32:39], s[0:1], 64')
    a('s_load_dwordx4 s[40:43], s[0:1], 96')
    a('v_lshrrev_b32 v1, 6, v0')
    a('v_and_b32 v0, 63, v0')
    a('v_readfirstlane_b32 s%d, v1' % S_WAVE)
    a('v_lshlrev_b32 v%d, 4, v0' % V_O16)
    a('s_and_b32 s%d, s2, 7' % S_TMP)
    a('s_lshl_b32 s%d, s%d, 5' % (S_TMP, S_TMP))
    a('s_lshr_b32 s%d, s2, 3' % S_T0)
    a('s_add_u32 s%d, s%d, s%d' % (S_REG, S_TMP, S_T0))
    a('s_lshr_b32 s%d, s%d, 4' % (S_HEAD, S_REG))
    a('s_lshl_b32 s%d, s%d, 18' % (S_CUR, S_REG))
    a('s_lshl_b32 s%d, s%d, 10' % (S_TMP, S_WAVE))
    a('s_add_u32 s%d, s%d, s%d' % (S_CUR, S_CUR, S_TMP))
    if rot:
        a.comment('the four 128-token chunks of the region are walked starting from chunk (wg + (wg >> 3)) & 3, so that neighbours are out of phase')
        a('s_mov_b32 s%d, s%d' % (S_BASE, S_CUR))
        a('s_lshr_b32 s%d, s2, 3' % S_CC)
        if rot == 'xs': a('s_add_u32 s%d, s%d, s2' % (S_CC, S_CC))
        a('s_and_b32 s%d, s%d, 3' % (S_CC, S_CC))
        a('s_lshl_b32 s%d, s%d, 16' % (S_TMP, S_CC))
        a('s_add_u32 s%d, s%d, s%d' % (S_CUR, S_CUR, S_TMP))
    for n in ('qk', 'qv'):
        a('s_mov_b32 s%d, 0x%x' % (SRD[n] + 2, size[n]))
        a('s_mov_b32 s%d, 0x00020000' % (SRD[n] + 3))
    a('s_and_b32 s%d, s%d, 15' % (S_T0, S_REG))
    a('s_lshl_b32 s%d, s%d, 9' % (S_T0, S_T0))
    a('s_lshl_b32 s%d, s%d, 1' % (S_TMP2, S_WAVE))
    a('s_lshl_b32 s%d, s%d, 8' % (S_QOFF, S_HEAD))
    a('s_getpc_b64 s[%d:%d]' % (S_TBL, S_TBL + 1))
    a.label('L_pc')
    a('s_add_u32 s%d, s%d, rope_consts-L_pc' % (S_TBL, S_TBL))
    a('s_addc_u32 s%d, s%d, 0' % (S_TBL + 1, S_TBL + 1))
    a('s_waitcnt lgkmcnt(0)')
    def mksrd(n, full=True):
        a('s_mov_b64 s[%d:%d], s[%d:%d]' % (SRD[n], SRD[n] + 1, karg[n], karg[n] + 1))
        if full:
            a('s_mov_b32 s%d, 0x%x' % (SRD[n] + 2, size[n]))
            a('s_mov_b32 s%d, 0x00020000' % (SRD[n] + 3))
    mksrd('qk', False); mksrd('qv', False)
    for x in range(first): big(x, S_CUR)
    a('s_cmp_eq_u32 s%d, 0' % S_WAVE)
    a('s_cselect_b32 s%d, s%d, s%d' % (S_SC, karg['kz'], karg['ks']))
    a('s_cselect_b32 s%d, s%d, s%d' % (S_SC + 1, karg['kz'] + 1, karg['ks'] + 1))
    a('s_cmp_eq_u32 s%d, 2' % S_WAVE)
    a('s_cselect_b32 s%d, s%d, s%d' % (S_SC, karg['vs'], S_SC))
    a('s_cselect_b32 s%d, s%d, s%d' % (S_SC + 1, karg['vs'] + 1, S_SC + 1))
    a('s_cmp_eq_u32 s%d, 3' % S_WAVE)
    a('s_cselect_b32 s%d, s%d, s%d' % (S_SC, karg['vz'], S_SC))
    a('s_cselect_b32 s%d, s%d, s%d' % (S_SC + 1, karg['vz'] + 1, S_SC + 1))
    a('s_mov_b32 s%d, 0x%x' % (S_SC + 2, 1 << 19))
    a('s_mov_b32 s%d, 0x00020000' % (S_SC + 3))
    a('s_lshl_b32 s%d, s%d, 11' % (S_TMP, S_WAVE))
    a('s_mov_b32 m0, s%d' % S_TMP)
    a('s_lshl_b32 s%d, s%d, 11' % (S_TMP, S_REG))
    a('buffer_load_dwordx4 v%d, %s, s%d offen lds' % (V_O16, s(S_SC, 4), S_TMP))
    a('buffer_load_dwordx4 v%d, %s, s%d offen offset:1024 lds' % (V_O16, s(S_SC, 4), S_TMP))
    QA, QB, CA, SA = V_S, V_S + 1, V_S + 2, V_S + 3
    RH, RL, SD = V_X, V_X + 4, V_X + 8
    mksrd('q'); mksrd('qcos'); mksrd('qsin')
    a('s_lshl_b32 s%d, s%d, 6' % (S_TMP, S_WAVE))
    a('v_add_u32 v%d, s%d, v0' % (V_T, S_TMP))
    a('v_lshlrev_b32 v%d, 1, v%d' % (V_T + 1, V_T))
    a('v_xor_b32 v%d, 0x80, v%d' % (V_T + 2, V_T + 1))
    a('s_cmp_ge_u32 s%d, 2' % S_WAVE)
    a('s_cbranch_scc1 L_noqld')
    a('buffer_load_ushort v%d, v%d, %s, s%d offen' % (QA, V_T + 1, srd('q'), S_QOFF))
    a('buffer_load_ushort v%d, v%d, %s, s%d offen' % (QB, V_T + 2, srd('q'), S_QOFF))
    a('buffer_load_ushort v%d, v%d, %s, 0 offen' % (CA, V_T + 1, srd('qcos')))
    a('buffer_load_ushort v%d, v%d, %s, 0 offen' % (SA, V_T + 1, srd('qsin')))
    a.label('L_noqld')
    a('s_cmp_lg_u32 s%d, 2' % S_WAVE)
    a('s_cbranch_scc1 L_nocld')
    a('global_load_dwordx4 %s, v%d, s[%d:%d]' % (v(RH, 4), V_O16, S_TBL, S_TBL + 1))
    a.label('L_nocld')
    for x in range(first, pre): big(x, S_CUR)
    a('s_waitcnt vmcnt(%d)' % (pre - first))
    T0, T1 = V_T + 3, V_T + 4
    for r in (QA, QB, CA, SA): a('v_lshlrev_b32 v%d, 16, v%d' % (r, r))
    a('s_cmp_eq_u32 s%d, 0' % S_WAVE)
    a('s_cselect_b32 s%d, 0x80000000, 0' % S_TMP)
    a('v_mul_f32 v%d, v%d, v%d' % (T0, QA, CA))
    a('v_xor_b32 v%d, s%d, v%d' % (QB, S_TMP, QB))
    a('v_mul_f32 v%d, v%d, v%d' % (T1, QB, SA))
    a('v_cvt_pk_bf16_f32 v%d, v%d, v%d' % (T0, T0, T1))
    a('v_lshlrev_b32 v%d, 16, v%d' % (T1, T0))
    a('v_and_b32 v%d, 0xffff0000, v%d' % (T0, T0))
    a('v_add_f32 v%d, v%d, v%d' % (T0, T0, T1))
    a('v_cvt_pk_bf16_f32 v%d, v%d, v%d' % (T0, T0, T0))
    a('v_lshlrev_b32 v%d, 16, v%d' % (T0, T0))
    a('v_lshlrev_b32 v%d, 2, v%d' % (V_T, V_T))
    a('s_cmp_ge_u32 s%d, 2' % S_WAVE)
    a('s_cbranch_scc1 L_noq')
    a('ds_write_b32 v%d, v%d offset:%d' % (V_T, T0, L_QR))
    a.label('L_noq')
    a('s_cmp_lg_u32 s%d, 2' % S_WAVE)
    a('s_cbranch_scc1 L_noc')
    a('ds_write_b128 v%d, %s offset:%d' % (V_O16, v(RH, 4), L_CT))
    a.label('L_noc')
    a('s_waitcnt lgkmcnt(0)')
    a('s_barrier')
    for n in ('out', 'ws', 'dbg'): mksrd(n)
    for r, val in ((S_M1, 0xcccccccc), (S_M0, 0xaaaaaaaa)):
        a('s_mov_b32 s%d, 0x%x' % (r, val)); a('s_mov_b32 s%d, 0x%x' % (r + 1, val))
    a('s_mov_b32 s%d, 0x%08x' % (S_C, f2u((128.0 ** -0.5) * math.log2(math.e))))
    a('s_mov_b32 s%d, 0x%x' % (S_OOB, OOB))
    if rot:
        a('v_and_b32 v%d, 31, v0' % V_T)
        a('v_lshlrev_b32 v%d, 4, v%d' % (V_T, V_T))
        a('v_xor_b32 v%d, 0x100, v%d' % (V_T + 1, V_T))
        a('v_and_b32 v%d, 15, v0' % (V_T + 2))
        a('v_lshlrev_b32 v%d, 4, v%d' % (V_T + 3, V_T + 2))
        a('ds_read_b128 %s, v%d offset:%d' % (v(V_QA, 4), V_T, L_QR))
        a('ds_read_b128 %s, v%d offset:%d' % (v(V_QB, 4), V_T + 1, L_QR))
        a('ds_read_b128 %s, v%d offset:%d' % (v(RH, 4), V_T + 3, L_CT))
        a('ds_read_b128 %s, v%d offset:%d' % (v(RL, 4), V_T + 3, L_CT + 256))
        a('ds_read_b128 %s, v%d offset:%d' % (v(V_C2, 4), V_T + 3, L_CT + 512))
        a('ds_read_b128 %s, v%d offset:%d' % (v(SD, 4), V_T + 3, L_CT + 768))
        a('v_lshlrev_b32 v%d, 5, v%d' % (V_T + 2, V_T + 2))
        a('v_lshrrev_b32 v%d, 4, v0' % (V_T + 4))
        a('v_lshl_add_u32 v%d, v%d, 1, v%d' % (V_T + 2, V_T + 4, V_T + 2))
        a('s_lshl_b32 s%d, s%d, 2' % (S_TMP, S_TMP2))
        a('v_add_u32 v%d, s%d, v%d' % (V_SCB, S_TMP, V_T + 2))
        a('s_lshl_b32 s%d, s%d, 9' % (S_TMP, S_CC))
        a('v_add_u32 v%d, s%d, v%d' % (V_SCA, S_TMP, V_SCB))
        a('ds_read_u16 v%d, v%d offset:%d' % (V_KZN, V_SCA, L_SC))
        a('v_and_b32 v%d, 16, v0' % (V_T + 4))
        a('v_lshlrev_b32 v%d, 27, v%d' % (V_T + 5, V_T + 4))
        a('v_lshrrev_b32 v%d, 5, v0' % V_TI)
        a('s_add_u32 s%d, s%d, s%d' % (S_TMP, S_T0, S_TMP2))
        a('v_add_u32 v%d, s%d, v%d' % (V_TI, S_TMP, V_TI))
        a('s_waitcnt lgkmcnt(0)')
        for j in range(4): a('v_xor_b32 v%d, v%d, v%d' % (V_QB + j, V_T + 5, V_QB + j))
    else:
        QRA, QRB = V_W[1], V_O
        a('v_and_b32 v%d, 31, v0' % V_T)
        a('v_lshlrev_b32 v%d, 4, v%d' % (V_T, V_T))
        a('v_xor_b32 v%d, 0x100, v%d' % (V_T + 1, V_T))
        a('v_and_b32 v%d, 15, v0' % (V_T + 2))
        a('v_lshlrev_b32 v%d, 4, v%d' % (V_T + 3, V_T + 2))
        a('ds_read_b128 %s, v%d offset:%d' % (v(QRA, 4), V_T, L_QR))
        a('ds_read_b128 %s, v%d offset:%d' % (v(QRB, 4), V_T + 1, L_QR))
        a('ds_read_b128 %s, v%d offset:%d' % (v(RH, 4), V_T + 3, L_CT))
        a('ds_read_b128 %s, v%d offset:%d' % (v(RL, 4), V_T + 3, L_CT + 256))
        a('ds_read_b128 %s, v%d offset:%d' % (v(V_C2, 4), V_T + 3, L_CT + 512))
        a('ds_read_b128 %s, v%d offset:%d' % (v(SD, 4), V_T + 3, L_CT + 768))
        a('v_lshlrev_b32 v%d, 5, v%d' % (V_T + 2, V_T + 2))
        a('v_lshrrev_b32 v%d, 4, v0' % (V_T + 4))
        a('v_lshl_add_u32 v%d, v%d, 1, v%d' % (V_T + 2, V_T + 4, V_T + 2))
        a('s_lshl_b32 s%d, s%d, 2' % (S_TMP, S_TMP2))
        a('v_add_u32 v%d, s%d, v%d' % (V_SCA, S_TMP, V_T + 2))
        a('ds_read_u16 v%d, v%d offset:%d' % (V_KZN, V_SCA, L_SC))
        SM, SN, TF = V_T + 4, V_T + 5, V_T + 6
        a('v_and_b32 v%d, 16, v0' % SM)
        a('v_lshlrev_b32 v%d, 27, v%d' % (SN, SM))
        a('v_lshrrev_b32 v%d, 5, v0' % TF)
        a('s_add_u32 s%d, s%d, s%d' % (S_TMP, S_T0, S_TMP2))
        a('v_add_u32 v%d, s%d, v%d' % (TF, S_TMP, TF))
        a('v_cvt_f32_u32 v%d, v%d' % (TF, TF))
        a('s_waitcnt lgkmcnt(0)')
        for j in range(4): a('v_xor_b32 v%d, v%d, v%d' % (QRB + j, SN, QRB + j))
        for j in range(4): a('v_mul_f32 v%d, v%d, v%d' % (RH + j, TF, RH + j))
        for j in range(4): a('v_fract_f32 v%d, v%d' % (RH + j, RH + j))
        for j in range(4): a('v_fmac_f32 v%d, v%d, v%d' % (RH + j, TF, RL + j))
        for j in range(4): a('v_sin_f32 v%d, v%d' % (RL + j, RH + j))
        for j in range(4): a('v_cos_f32 v%d, v%d' % (RH + j, RH + j))
        W0, W1 = V_W
        a('s_nop 0')
        for j in range(4): a('v_mul_f32 v%d, v%d, v%d' % (W0 + j, QRA + j, RH + j))
        for j in range(4): a('v_fmac_f32 v%d, v%d, v%d' % (W0 + j, QRB + j, RL + j))
        for j in range(4): a('v_mul_f32 v%d, v%d, v%d' % (V_S + j, QRB + j, RH + j))
        for j in range(4): a('v_fma_f32 v%d, -v%d, v%d, v%d' % (V_S + j, QRA + j, RL + j, V_S + j))
        for j in range(4): a('v_mul_f32 v%d, v%d, v%d' % (W1 + j, V_C2 + j, W0 + j))
        for j in range(4): a('v_mul_f32 v%d, v%d, v%d' % (V_S + j, SD + j, V_S + j))
        for j in range(4): a('v_fma_f32 v%d, v%d, 0.5, -v%d' % (W1 + j, W1 + j, V_S + j))
    a('v_mov_b32 v%d, 0xff800000' % V_M)
    a('v_mov_b32 v%d, 0' % V_L)
    for j in range(4): a('v_mov_b32 v%d, 0' % (V_O + j))
    a('s_mov_b32 s%d, 0' % S_IT)

    def loop(tag, L):
        plan = {e: [e + L] for e in range(32)}
        if boost:
            b = boost
            seqn = L
            plan = {}
            for e in range(32):
                cnt = 2 if 16 - b <= e < 16 else (0 if 16 <= e < 16 + b else 1)
                plan[e] = list(range(seqn, seqn + cnt)); seqn += cnt
            assert seqn == 32 + L
        def younger(e):
            issued = max([x for ee in range(e) for x in plan[ee]] + [L - 1])
            return issued - e
        def events(e):
            for x in plan[e]:
                if x < pre:
                    a('s_cmp_eq_u32 s%d, 0' % S_IT)
                    a('s_cbranch_scc1 L_skip%s_%d' % (tag, x))
                    big(x, S_CUR)
                    a.label('L_skip%s_%d' % (tag, x))
                elif x < 32:
                    big(x, S_CUR)
                else:
                    big(x - 32, S_NXT)
        a.label('L_chunk' + tag)
        if rot:
            a('s_add_u32 s%d, s%d, 1' % (S_TMP2, S_CC))
            a('s_and_b32 s%d, s%d, 3' % (S_TMP2, S_TMP2))
            a('s_lshl_b32 s%d, s%d, 16' % (S_NXT, S_TMP2))
            a('s_add_u32 s%d, s%d, s%d' % (S_NXT, S_NXT, S_BASE))
            a('s_cmp_eq_u32 s%d, %d' % (S_IT, nch - 1))
            a('s_cselect_b32 s%d, s%d, s%d' % (S_NXT, S_OOB, S_NXT))
            a('s_waitcnt lgkmcnt(0)')
            a('v_lshlrev_b32 v%d, 16, v%d' % (V_KZ, V_KZN))
            a('ds_read_u16 v%d, v%d offset:%d' % (V_KS, V_SCA, L_SC + 2048))
            a('ds_read_u16 v%d, v%d offset:%d' % (V_VS, V_SCA, L_SC + 4096))
            a('ds_read_u16 v%d, v%d offset:%d' % (V_VZ, V_SCA, L_SC + 6144))
            a('s_lshl_b32 s%d, s%d, 9' % (S_TMP, S_TMP2))
            a('v_add_u32 v%d, s%d, v%d' % (V_SCA, S_TMP, V_SCB))
            a('ds_read_u16 v%d, v%d offset:%d' % (V_KZN, V_SCA, L_SC))
            TFv = V_T + 6
            a('s_lshl_b32 s%d, s%d, 7' % (S_TMP, S_CC))
            a('v_add_u32 v%d, s%d, v%d' % (TFv, S_TMP, V_TI))
            a('v_cvt_f32_u32 v%d, v%d' % (TFv, TFv))
            a('s_mov_b32 s%d, s%d' % (S_CC, S_TMP2))
            for j in range(4): a('v_mul_f32 v%d, v%d, v%d' % (V_A + j, TFv, RH + j))
            for j in range(4): a('v_fract_f32 v%d, v%d' % (V_A + j, V_A + j))
            for j in range(4): a('v_fmac_f32 v%d, v%d, v%d' % (V_A + j, TFv, RL + j))
            for j in range(4): a('v_sin_f32 v%d, v%d' % (V_SN + j, V_A + j))
            for j in range(4): a('v_cos_f32 v%d, v%d' % (V_A + j, V_A + j))
            W0_, W1_ = V_W
            a('s_nop 0')
            for j in range(4): a('v_mul_f32 v%d, v%d, v%d' % (W0_ + j, V_QA + j, V_A + j))
            for j in range(4): a('v_fmac_f32 v%d, v%d, v%d' % (W0_ + j, V_QB + j, V_SN + j))
            for j in range(4): a('v_mul_f32 v%d, v%d, v%d' % (V_S + j, V_QB + j, V_A + j))
            for j in range(4): a('v_fma_f32 v%d, -v%d, v%d, v%d' % (V_S + j, V_QA + j, V_SN + j, V_S + j))
            for j in range(4): a('v_mul_f32 v%d, v%d, v%d' % (W1_ + j, V_C2 + j, W0_ + j))
            for j in range(4): a('v_mul_f32 v%d, v%d, v%d' % (V_S + j, SD + j, V_S + j))
            for j in range(4): a('v_fma_f32 v%d, v%d, 0.5, -v%d' % (W1_ + j, W1_ + j, V_S + j))
        else:
            a('s_cmp_eq_u32 s%d, %d' % (S_IT, nch - 1))
            a('s_cselect_b32 s%d, s%d, %d' % (S_NXT, S_OOB, CHUNKB))
            a('s_add_u32 s%d, s%d, s%d' % (S_NXT, S_NXT, S_CUR))
            a('s_waitcnt lgkmcnt(0)')
            a('v_lshlrev_b32 v%d, 16, v%d' % (V_KZ, V_KZN))
            a('ds_read_u16 v%d, v%d offset:%d' % (V_KS, V_SCA, L_SC + 2048))
            a('ds_read_u16 v%d, v%d offset:%d' % (V_VS, V_SCA, L_SC + 4096))
            a('ds_read_u16 v%d, v%d offset:%d' % (V_VZ, V_SCA, L_SC + 6144))
            a('ds_read_u16 v%d, v%d offset:%d' % (V_KZN, V_SCA, L_SC + 512))
            a('v_add_u32 v%d, 0x200, v%d' % (V_SCA, V_SCA))
        for i in range(16):
            K = slot(i)
            cur, prev = V_W[i & 1], V_W[(i + 1) & 1]
            dpp('v_mov_b32_dpp', V_B, V_KZ, None, 'row_newbcast:%d' % i)
            if i >= 8: dpp('v_add_f32_dpp', V_S + i - 8, V_S + i - 8, V_S + i - 8, 'row_mirror', 0x3)
            a('s_waitcnt vmcnt(%d)' % younger(i))
            events(i)
            if i == 0 and stamps:
                a('s_cmp_lg_u32 s%d, 0' % S_IT)
                a('s_cbranch_scc1 L_nost1' + tag)
                stamp(1)
                a.label('L_nost1' + tag)
            for j in range(4): a('v_cvt_f32_i32 v%d, v%d' % (K + j, K + j))
            for j in range(4): a('v_sub_f32 v%d, v%d, v%d' % (K + j, K + j, V_B))
            D = V_S + i if i < 8 else V_TT
            a('v_mul_f32 v%d, v%d, v%d' % (D, K, cur))
            for j in range(1, 4): a('v_fmac_f32 v%d, v%d, v%d' % (D, K + j, cur + j))
            for j in range(4): a('v_fma_f32 v%d, v%d, v%d, -v%d' % (prev + j, V_C2 + j, cur + j, prev + j))
            if i >= 8: dpp('v_add_f32_dpp', V_S + i - 8, V_TT, V_TT, 'row_mirror', 0xc)
        a('s_nop 1')
        for i in range(4): dpp('v_add_f32_dpp', V_S + i, V_S + i, V_S + i, 'row_half_mirror', 0x5)
        for i in range(4): dpp('v_add_f32_dpp', V_S + i, V_S + 4 + i, V_S + 4 + i, 'row_half_mirror', 0xa)
        for i in range(4): dpp('v_add_f32_dpp', V_S + 4 + i, V_S + i, V_S + i, 'quad_perm:[2,3,0,1]')
        a('v_cndmask_b32 v%d, v%d, v%d, s[%d:%d]' % (V_S, V_S + 4, V_S + 6, S_M1, S_M1 + 1))
        a('v_cndmask_b32 v%d, v%d, v%d, s[%d:%d]' % (V_S + 1, V_S + 5, V_S + 7, S_M1, S_M1 + 1))
        a('s_waitcnt lgkmcnt(0)')
        a('v_lshlrev_b32 v%d, 16, v%d' % (V_KS, V_KS))
        dpp('v_add_f32_dpp', V_S + 2, V_S, V_S, 'quad_perm:[1,0,3,2]')
        dpp('v_add_f32_dpp', V_S + 3, V_S + 1, V_S + 1, 'quad_perm:[1,0,3,2]')
        a('v_lshlrev_b32 v%d, 16, v%d' % (V_VS, V_VS))
        a('v_cndmask_b32 v%d, v%d, v%d, s[%d:%d]' % (V_S, V_S + 2, V_S + 3, S_M0, S_M0 + 1))
        LG, X, Y = V_S, V_S + 1, V_S + 2
        a('v_mul_f32 v%d, v%d, v%d' % (LG, LG, V_KS))
        a('v_lshlrev_b32 v%d, 16, v%d' % (V_VZ, V_VZ))
        a('v_mov_b32 v%d, v%d' % (X, LG))
        a('s_nop 1')
        a('v_permlane16_swap_b32 v%d, v%d' % (LG, X))
        a('v_add_f32 v%d, v%d, v%d' % (LG, LG, X))
        a('v_mul_f32 v%d, s%d, v%d' % (LG, S_C, LG))
        a('s_nop 1')
        dpp('v_max_f32_dpp', X, LG, LG, 'row_ror:8')
        for n in (4, 2, 1):
            a('s_nop 1')
            dpp('v_max_f32_dpp', X, X, X, 'row_ror:%d' % n)
        a('v_mov_b32 v%d, v%d' % (Y, X))
        a('s_nop 1')
        a('v_permlane32_swap_b32 v%d, v%d' % (X, Y))
        MN, AL = V_S + 3, V_S + 7
        a('v_max3_f32 v%d, v%d, v%d, v%d' % (MN, X, Y, V_M))
        PP, AA, AZ = V_S + 4, V_S + 5, V_S + 6
        a('v_sub_f32 v%d, v%d, v%d' % (PP, LG, MN))
        a('v_sub_f32 v%d, v%d, v%d' % (AL, V_M, MN))
        a('v_exp_f32 v%d, v%d' % (PP, PP))
        a('v_exp_f32 v%d, v%d' % (AL, AL))
        a('v_mov_b32 v%d, v%d' % (V_M, MN))
        a('v_mul_f32 v%d, v%d, v%d' % (AA, PP, V_VS))
        a('v_mul_f32 v%d, v%d, v%d' % (AZ, AA, V_VZ))
        a('v_fma_f32 v%d, v%d, v%d, v%d' % (V_L, V_L, AL, PP))
        a('s_nop 0')
        for n in (8, 4, 2, 1):
            dpp('v_add_f32_dpp', AZ, AZ, AZ, 'row_ror:%d' % n)
            a('s_nop 1')
        for j in range(4): a('v_fma_f32 v%d, v%d, v%d, -v%d' % (V_O + j, V_O + j, AL, AZ))
        if stamps:
            a('s_cmp_lg_u32 s%d, 0' % S_IT)
            a('s_cbranch_scc1 L_nost2' + tag)
            stamp(2)
            a.label('L_nost2' + tag)
        for i in range(16):
            R = slot(16 + i)
            dpp('v_mov_b32_dpp', V_B, AA, None, 'row_newbcast:%d' % i)
            a('s_waitcnt vmcnt(%d)' % younger(16 + i))
            events(16 + i)
            for j in range(4): a('v_cvt_f32_i32 v%d, v%d' % (R + j, R + j))
            for j in range(4): a('v_fmac_f32 v%d, v%d, v%d' % (V_O + j, V_B, R + j))
        a('s_mov_b32 s%d, s%d' % (S_CUR, S_NXT))
        a('s_add_u32 s%d, s%d, 1' % (S_IT, S_IT))
        a('s_cmp_lt_u32 s%d, %d' % (S_IT, nch))
        a('s_cbranch_scc1 L_chunk' + tag)
    if parity and le != lo:
        a.comment('workgroups on odd XCDs keep more loads in flight (they are served more slowly when the memory system is saturated)')
        a('s_getreg_b32 s%d, hwreg(HW_REG_XCC_ID, 0, 1)' % S_TMP)
        a('s_cmp_eq_u32 s%d, 1' % S_TMP)
        a('s_cbranch_scc1 L_odd')
        loop('e', le)
        a('s_branch L_done')
        a.label('L_odd')
        loop('o', lo)
        a.label('L_done')
    else:
        loop('e', le)
    stamp(3)
    E = V_T + 3
    a('v_mov_b32 v%d, v%d' % (E + 3, V_M))
    for n in (8, 4, 2, 1):
        dpp('v_add_f32_dpp', V_L, V_L, V_L, 'row_ror:%d' % n)
        if n == 8: a('v_permlane32_swap_b32 v%d, v%d' % (V_O, V_O + 2))
        elif n == 4: a('v_permlane32_swap_b32 v%d, v%d' % (V_O + 1, V_O + 3))
        elif n == 2: a('v_add_f32 v%d, v%d, v%d' % (E, V_O, V_O + 2))
        else: a('v_add_f32 v%d, v%d, v%d' % (E + 1, V_O + 1, V_O + 3))
        a('s_nop 0')
    a('v_mov_b32 v%d, v%d' % (E + 2, V_L))
    a('s_lshl_b32 s%d, s%d, 10' % (S_TMP, S_WAVE))
    a('v_add_u32 v%d, s%d, v%d' % (V_T, S_TMP, V_O16))
    a('v_permlane32_swap_b32 v%d, v%d' % (V_L, E + 2))
    a('v_add_f32 v%d, v%d, v%d' % (E + 2, E + 2, V_L))
    a('ds_write_b128 v%d, %s offset:%d' % (V_T, v(E, 4), L_REC))
    a('s_waitcnt lgkmcnt(0)')
    a('s_cmp_lg_u32 s%d, 0' % S_WAVE)
    a('s_cbranch_scc1 L_others')
    V_C1K, V_O8, V_OUT = V_T, V_T + 1, V_T + 2
    a('v_and_b32 v%d, 15, v0' % V_C1K)
    a('v_lshlrev_b32 v%d, 10, v%d' % (V_C1K, V_C1K))
    a('v_lshlrev_b32 v%d, 3, v0' % V_O8)
    a('v_and_b32 v%d, 31, v0' % V_OUT)
    a('v_lshlrev_b32 v%d, 3, v%d' % (V_OUT, V_OUT))
    a('v_lshrrev_b32 v%d, 5, v0' % V_B)
    a('v_lshl_add_u32 v%d, v%d, 2, v%d' % (V_OUT, V_B, V_OUT))
    a('s_barrier')
    stamp(4)
    if stamps: a('s_waitcnt lgkmcnt(0)')
    Q = lambda w: V_X + 4 * w
    for w in range(4): a('ds_read_b128 %s, v%d offset:%d' % (v(Q(w), 4), V_O16, L_REC + 1024 * w))
    a('s_waitcnt lgkmcnt(1)')
    a('v_max3_f32 v%d, v%d, v%d, v%d' % (E + 3, Q(0) + 3, Q(1) + 3, Q(2) + 3))
    a('s_waitcnt lgkmcnt(0)')
    a('v_max_f32 v%d, v%d, v%d' % (E + 3, E + 3, Q(3) + 3))
    for w in range(4): a('v_sub_f32 v%d, v%d, v%d' % (Q(w) + 3, Q(w) + 3, E + 3))
    for w in range(4): a('v_exp_f32 v%d, v%d' % (Q(w) + 3, Q(w) + 3))
    a('s_nop 0')
    for j in range(3): a('v_mul_f32 v%d, v%d, v%d' % (E + j, Q(0) + j, Q(0) + 3))
    for w in range(1, 4):
        for j in range(3): a('v_fmac_f32 v%d, v%d, v%d' % (E + j, Q(w) + j, Q(w) + 3))
    stamp(5)
    a('s_lshl_b32 s%d, s%d, 10' % (S_TMP, S_REG))
    a('buffer_store_dwordx2 %s, v%d, %s, s%d offen sc1' % (v(E, 2), V_O8, srd('ws'), S_TMP))
    a('s_mov_b64 exec, 0xffff')
    a('buffer_store_dwordx2 %s, v%d, %s, s%d offen offset:512 sc1' % (v(E + 2, 2), V_O8, srd('ws'), S_TMP))
    a('s_mov_b64 exec, 1')
    a('s_waitcnt vmcnt(0)')
    stamp(6)
    a('v_mov_b32 v%d, 1' % V_B)
    a('s_lshl_b32 s%d, s%d, 4' % (S_TMP, S_HEAD))
    a('buffer_atomic_add v%d, off, %s, s%d sc0 sc1' % (V_B, srd('dbg'), S_TMP))
    a('s_mov_b64 exec, -1')
    a('s_lshl_b32 s%d, s%d, 14' % (S_REG, S_HEAD))
    a('s_waitcnt vmcnt(0)')
    a('v_readfirstlane_b32 s%d, v%d' % (S_TMP2, V_B))
    stamp(7)
    a('s_nop 3')
    a('s_cmp_lg_u32 s%d, 15' % S_TMP2)
    a('s_cbranch_scc1 L_notlast' if stamps else 's_cbranch_scc1 L_end')
    LM = V_S
    R = lambda i: V_SLOT + 2 * i
    a('buffer_load_dwordx2 %s, v%d, %s, s%d offen offset:512 sc1' % (v(LM, 2), V_C1K, srd('ws'), S_REG))
    for i in range(16):
        if i % 4 == 0: a('s_add_u32 s%d, s%d, %d' % (S_TMP, S_REG, (i // 4) * 4096))
        a('buffer_load_dwordx2 %s, v%d, %s, s%d offen offset:%d sc1' % (v(R(i), 2), V_O8, srd('ws'), S_TMP, (i % 4) * 1024))
    a('s_waitcnt vmcnt(16)')
    stamp(8)
    F, M_ = V_S + 2, E + 3
    dpp('v_max_f32_dpp', M_, LM + 1, LM + 1, 'row_ror:8')
    for n in (4, 2, 1):
        a('s_nop 1')
        dpp('v_max_f32_dpp', M_, M_, M_, 'row_ror:%d' % n)
    a('v_sub_f32 v%d, v%d, v%d' % (F, LM + 1, M_))
    a('v_exp_f32 v%d, v%d' % (F, F))
    a('s_nop 0')
    a('v_mul_f32 v%d, v%d, v%d' % (E + 2, LM, F))
    a('v_mov_b32 v%d, 0' % E)
    a('v_mov_b32 v%d, 0' % (E + 1))
    for i in range(16):
        a('s_waitcnt vmcnt(%d)' % (15 - i))
        dpp('v_fmac_f32_dpp', E, F, R(i), 'row_newbcast:%d' % i)
        dpp('v_fmac_f32_dpp', E + 1, F, R(i) + 1, 'row_newbcast:%d' % i)
        if i in (0, 2, 4, 6): dpp('v_add_f32_dpp', E + 2, E + 2, E + 2, 'row_ror:%d' % (8 >> (i // 2)))
    stamp(9)
    a('v_rcp_f32 v%d, v%d' % (E + 2, E + 2))
    a('s_nop 0')
    a('v_mul_f32 v%d, v%d, v%d' % (E, E, E + 2))
    a('v_mul_f32 v%d, v%d, v%d' % (E + 1, E + 1, E + 2))
    a('v_cvt_pk_bf16_f32 v%d, v%d, v%d' % (E, E, E + 1))
    a('buffer_store_dword v%d, v%d, %s, s%d offen' % (E, V_OUT, srd('out'), S_QOFF))
    if stamps:
        a('s_waitcnt vmcnt(0)')
        stamp(10)
        flush_stamps(10)
        a('s_endpgm')
        a.label('L_notlast')
        flush_stamps(7)
    a('s_endpgm')
    a.label('L_others')
    a('s_barrier')
    a.label('L_end')
    a('s_endpgm')
    rh, rl, c2, sd = rope_tables(8)
    a.lines.append('.p2align 6')
    a.lines.append('.type rope_consts,@object')
    a.lines.append('rope_consts:')
    for tab in (rh, rl, c2, sd):
        for b in range(0, 64, 8):
            a.lines.append('    .long ' + ', '.join('0x%08x' % x for x in tab[b:b + 8]))
    a.lines.append('.size rope_consts, 1024')
    launch = '; @launch grid=(256,1,1) block=(256,1,1) lds=%d' % lds
    notes = '''; Single-query attention over a quantised KV cache: 256 workgroups (16 heads x 16 ranges of 512 tokens) x 4 waves.
; * a wave walks 128 tokens in 4 chunks of 32 (two tokens per load, %d loads in flight): dequantise K, dot with the
;   position-rotated query, online softmax (true running maximum), weighted sum of the dequantised V; waves and
;   workgroups are merged with the usual max / rescale rule.
; * RoPE on K is applied on the query side (same bilinear form). k_cos / k_sin are the constant tables
;   cos / sin(t * 10000^(-f/64)); they are regenerated from the 64 inverse frequencies (table rope_consts at the end
;   of this file: revolutions per token split hi + lo, 2 cos(8 f), sin(8 f)) instead of being streamed.
; * cross-workgroup hand-off: record in d_ws with write-through stores, arrival counter per head in d_debug,
;   the workgroup whose add comes last reads the 16 records and writes the output.
; * the LDS size keeps it at one workgroup per CU.
''' % le
    return wrap(a.text(), launch, NV, notes=notes)

if __name__ == '__main__':
    kw = {}
    for arg in sys.argv[2:]:
        k, val = arg.split('=')
        kw[k] = int(val) if val.lstrip('-').isdigit() else val
    open(sys.argv[1], 'w').write(gen(**kw))
```

```python
import sys, math
from asmlib import *
from consts import rope_tables, f2u

OOB = 0x7c000000

def gen(kv_flags='nt', le=6, lo=10, first=3, stamps=0, lds=90112, boost=0, nch=4, parity=1, rot='', ring=16, pre=16, bigv=0, prel=0):
    a = Asm()
    S_WAVE, S_CUR, S_NXT, S_IT = 3, 4, 5, 6
    S_TBL = 8
    S_QOFF, S_HEAD, S_TMP, S_T0, S_TMP2, S_REG = 10, 11, 12, 13, 14, 15
    SRD = dict(qk=44, qv=48, q=68, qcos=72, qsin=76, out=80, ws=84, dbg=88)
    karg = dict(q=16, qk=18, ks=20, kz=22, qv=24, vs=26, vz=28, qcos=30, qsin=32, out=38, dbg=40, ws=42)
    size = dict(qk=1 << 26, qv=1 << 26, q=4096, qcos=256, qsin=256, out=4096, ws=1 << 21, dbg=256)
    S_M1, S_M0, S_C, S_OOB = 16, 18, 22, 23
    S_SC = 92
    def srd(n): return s(SRD[n], 4)
    V_O16, V_SCA = 1, 2
    V_KZ, V_KS, V_VS, V_VZ, V_B = 3, 4, 5, 6, 7
    V_W = [8, 12]; V_C2 = 16; V_O = 20
    V_S = 24; V_TT = 32
    V_T = 33
    V_M, V_L, V_KZN = 40, 41, 42
    V_LR = 56
    V_X = 44
    V_QA, V_QB, V_TI, V_SCB = 60, 64, 68, 69
    V_A, V_SN = 72, 76
    V_SLOT = 80 if rot else 60
    S_CC, S_BASE = 7, 96
    NV = V_SLOT + 4 * ring
    def slot(x): return V_SLOT + 4 * (x % ring)
    assert max(le, lo) + boost < ring and pre <= ring and pre >= max(le, lo)
    L_SC, L_QR, L_CT, L_REC = 0, 8192, 8704, 10240
    STEPB = 4096; CHUNKB = 16 * STEPB
    NST = 12
    def stamp(k):
        if stamps:
            r = 100 if k == 0 else 24 + 2 * (k - 1)
            a('s_memrealtime s[%d:%d]' % (r, r + 1))
    def flush_stamps(k_last):
        if not stamps: return
        a('s_waitcnt lgkmcnt(0)')
        a('s_mul_i32 s13, s2, %d' % (NST * 4))
        a('s_add_u32 s13, s13, 0x100000')
        a('s_mov_b64 exec, 1')
        a('s_getreg_b32 s8, hwreg(HW_REG_XCC_ID)')
        for k in range(NST):
            k2 = min(k, k_last)
            r = 100 if k2 == 0 else 24 + 2 * (k2 - 1)
            if k == NST - 1: r = 8
            a('v_mov_b32 v%d, s%d' % (V_T + 6, r))
            a('buffer_store_dword v%d, off, %s, s13 offset:%d' % (V_T + 6, srd('ws'), 4 * k))
            a('s_nop 1')
        a('s_mov_b64 exec, -1')
    def dpp(op, d, s0, s1, ctrl, bank=0xf):
        if s1 is None: a('%s v%d, v%d %s row_mask:0xf bank_mask:0x%x' % (op, d, s0, ctrl, bank))
        else: a('%s v%d, v%d, v%d %s row_mask:0xf bank_mask:0x%x' % (op, d, s0, s1, ctrl, bank))
    def big(x, base):
        i = x % 16
        if i == 0:
            so = 's%d' % base
        else:
            a('s_add_u32 s%d, s%d, %d' % (S_TMP, base, i * STEPB)); so = 's%d' % S_TMP
        a('buffer_load_dwordx4 %s, v%d, %s, %s offen %s' % (v(slot(x), 4), V_O16, srd('qk' if x < 16 else 'qv'), so, kv_flags))

    a('s_cmp_ge_u32 s2, 256')
    a('s_cbranch_scc1 L_end')
    stamp(0)
    a('s_load_dwordx16 s[16:31], s[0:1], 0')
    a('s_load_dwordx8 s[32:39], s[0:1], 64')
    a('s_load_dwordx4 s[40:43], s[0:1], 96')
    a('v_lshrrev_b32 v1, 6, v0')
    a('v_and_b32 v0, 63, v0')
    a('v_readfirstlane_b32 s%d, v1' % S_WAVE)
    a('v_lshlrev_b32 v%d, 4, v0' % V_O16)
    a('s_and_b32 s%d, s2, 7' % S_TMP)
    a('s_lshl_b32 s%d, s%d, 5' % (S_TMP, S_TMP))
    a('s_lshr_b32 s%d, s2, 3' % S_T0)
    a('s_add_u32 s%d, s%d, s%d' % (S_REG, S_TMP, S_T0))
    a('s_lshr_b32 s%d, s%d, 4' % (S_HEAD, S_REG))
    a('s_lshl_b32 s%d, s%d, 18' % (S_CUR, S_REG))
    a('s_lshl_b32 s%d, s%d, 10' % (S_TMP, S_WAVE))
    a('s_add_u32 s%d, s%d, s%d' % (S_CUR, S_CUR, S_TMP))
    if rot:
        a.comment('the four 128-token chunks of the region are walked starting from chunk (wg + (wg >> 3)) & 3, so that neighbours are out of phase')
        a('s_mov_b32 s%d, s%d' % (S_BASE, S_CUR))
        a('s_lshr_b32 s%d, s2, 3' % S_CC)
        if rot == 'xs': a('s_add_u32 s%d, s%d, s2' % (S_CC, S_CC))
        elif rot == 'xor': a('s_xor_b32 s%d, s%d, s2' % (S_CC, S_CC))
        elif rot == 'x2s':
            a('s_lshr_b32 s%d, s2, 1' % S_TMP); a('s_and_b32 s%d, s%d, 3' % (S_TMP, S_TMP)); a('s_add_u32 s%d, s%d, s%d' % (S_CC, S_CC, S_TMP))
        elif rot == 'x4s':
            a('s_lshr_b32 s%d, s2, 2' % S_TMP); a('s_and_b32 s%d, s%d, 1' % (S_TMP, S_TMP)); a('s_lshl_b32 s%d, s%d, 1' % (S_TMP, S_TMP))
            a('s_add_u32 s%d, s%d, s%d' % (S_CC, S_CC, S_TMP)); a('s_add_u32 s%d, s%d, s2' % (S_CC, S_CC))
        a('s_and_b32 s%d, s%d, 3' % (S_CC, S_CC))
        a('s_lshl_b32 s%d, s%d, 16' % (S_TMP, S_CC))
        a('s_add_u32 s%d, s%d, s%d' % (S_CUR, S_CUR, S_TMP))
    for n in ('qk', 'qv'):
        a('s_mov_b32 s%d, 0x%x' % (SRD[n] + 2, size[n]))
        a('s_mov_b32 s%d, 0x00020000' % (SRD[n] + 3))
    a('s_and_b32 s%d, s%d, 15' % (S_T0, S_REG))
    a('s_lshl_b32 s%d, s%d, 9' % (S_T0, S_T0))
    a('s_lshl_b32 s%d, s%d, 1' % (S_TMP2, S_WAVE))
    a('s_lshl_b32 s%d, s%d, 8' % (S_QOFF, S_HEAD))
    a('s_getpc_b64 s[%d:%d]' % (S_TBL, S_TBL + 1))
    a.label('L_pc')
    a('s_add_u32 s%d, s%d, rope_consts-L_pc' % (S_TBL, S_TBL))
    a('s_addc_u32 s%d, s%d, 0' % (S_TBL + 1, S_TBL + 1))
    a('s_waitcnt lgkmcnt(0)')
    def mksrd(n, full=True):
        a('s_mov_b64 s[%d:%d], s[%d:%d]' % (SRD[n], SRD[n] + 1, karg[n], karg[n] + 1))
        if full:
            a('s_mov_b32 s%d, 0x%x' % (SRD[n] + 2, size[n]))
            a('s_mov_b32 s%d, 0x00020000' % (SRD[n] + 3))
    mksrd('qk', False); mksrd('qv', False)
    for x in range(first): big(x, S_CUR)
    a('s_cmp_eq_u32 s%d, 0' % S_WAVE)
    a('s_cselect_b32 s%d, s%d, s%d' % (S_SC, karg['kz'], karg['ks']))
    a('s_cselect_b32 s%d, s%d, s%d' % (S_SC + 1, karg['kz'] + 1, karg['ks'] + 1))
    a('s_cmp_eq_u32 s%d, 2' % S_WAVE)
    a('s_cselect_b32 s%d, s%d, s%d' % (S_SC, karg['vs'], S_SC))
    a('s_cselect_b32 s%d, s%d, s%d' % (S_SC + 1, karg['vs'] + 1, S_SC + 1))
    a('s_cmp_eq_u32 s%d, 3' % S_WAVE)
    a('s_cselect_b32 s%d, s%d, s%d' % (S_SC, karg['vz'], S_SC))
    a('s_cselect_b32 s%d, s%d, s%d' % (S_SC + 1, karg['vz'] + 1, S_SC + 1))
    a('s_mov_b32 s%d, 0x%x' % (S_SC + 2, 1 << 19))
    a('s_mov_b32 s%d, 0x00020000' % (S_SC + 3))
    a('s_lshl_b32 s%d, s%d, 11' % (S_TMP, S_WAVE))
    a('s_mov_b32 m0, s%d' % S_TMP)
    a('s_lshl_b32 s%d, s%d, 11' % (S_TMP, S_REG))
    a('buffer_load_dwordx4 v%d, %s, s%d offen lds' % (V_O16, s(S_SC, 4), S_TMP))
    a('buffer_load_dwordx4 v%d, %s, s%d offen offset:1024 lds' % (V_O16, s(S_SC, 4), S_TMP))
    QA, QB, CA, SA = V_S, V_S + 1, V_S + 2, V_S + 3
    RH, RL, SD = V_X, V_X + 4, V_X + 8
    mksrd('q'); mksrd('qcos'); mksrd('qsin')
    a('s_lshl_b32 s%d, s%d, 6' % (S_TMP, S_WAVE))
    a('v_add_u32 v%d, s%d, v0' % (V_T, S_TMP))
    a('v_lshlrev_b32 v%d, 1, v%d' % (V_T + 1, V_T))
    a('v_xor_b32 v%d, 0x80, v%d' % (V_T + 2, V_T + 1))
    a('s_cmp_ge_u32 s%d, 2' % S_WAVE)
    a('s_cbranch_scc1 L_noqld')
    a('buffer_load_ushort v%d, v%d, %s, s%d offen' % (QA, V_T + 1, srd('q'), S_QOFF))
    a('buffer_load_ushort v%d, v%d, %s, s%d offen' % (QB, V_T + 2, srd('q'), S_QOFF))
    a('buffer_load_ushort v%d, v%d, %s, 0 offen' % (CA, V_T + 1, srd('qcos')))
    a('buffer_load_ushort v%d, v%d, %s, 0 offen' % (SA, V_T + 1, srd('qsin')))
    a.label('L_noqld')
    a('s_cmp_lg_u32 s%d, 2' % S_WAVE)
    a('s_cbranch_scc1 L_nocld')
    a('global_load_dwordx4 %s, v%d, s[%d:%d]' % (v(RH, 4), V_O16, S_TBL, S_TBL + 1))
    a.label('L_nocld')
    for x in range(first, pre): big(x, S_CUR)
    a('s_waitcnt vmcnt(%d)' % (pre - first))
    T0, T1 = V_T + 3, V_T + 4
    for r in (QA, QB, CA, SA): a('v_lshlrev_b32 v%d, 16, v%d' % (r, r))
    a('s_cmp_eq_u32 s%d, 0' % S_WAVE)
    a('s_cselect_b32 s%d, 0x80000000, 0' % S_TMP)
    a('v_mul_f32 v%d, v%d, v%d' % (T0, QA, CA))
    a('v_xor_b32 v%d, s%d, v%d' % (QB, S_TMP, QB))
    a('v_mul_f32 v%d, v%d, v%d' % (T1, QB, SA))
    a('v_cvt_pk_bf16_f32 v%d, v%d, v%d' % (T0, T0, T1))
    a('v_lshlrev_b32 v%d, 16, v%d' % (T1, T0))
    a('v_and_b32 v%d, 0xffff0000, v%d' % (T0, T0))
    a('v_add_f32 v%d, v%d, v%d' % (T0, T0, T1))
    a('v_cvt_pk_bf16_f32 v%d, v%d, v%d' % (T0, T0, T0))
    a('v_lshlrev_b32 v%d, 16, v%d' % (T0, T0))
    a('v_lshlrev_b32 v%d, 2, v%d' % (V_T, V_T))
    a('s_cmp_ge_u32 s%d, 2' % S_WAVE)
    a('s_cbranch_scc1 L_noq')
    a('ds_write_b32 v%d, v%d offset:%d' % (V_T, T0, L_QR))
    a.label('L_noq')
    a('s_cmp_lg_u32 s%d, 2' % S_WAVE)
    a('s_cbranch_scc1 L_noc')
    a('ds_write_b128 v%d, %s offset:%d' % (V_O16, v(RH, 4), L_CT))
    a.label('L_noc')
    a('s_waitcnt lgkmcnt(0)')
    a('s_barrier')
    for n in ('out', 'ws', 'dbg'): mksrd(n)
    for r, val in ((S_M1, 0xcccccccc), (S_M0, 0xaaaaaaaa)):
        a('s_mov_b32 s%d, 0x%x' % (r, val)); a('s_mov_b32 s%d, 0x%x' % (r + 1, val))
    a('s_mov_b32 s%d, 0x%08x' % (S_C, f2u((128.0 ** -0.5) * math.log2(math.e))))
    a('s_mov_b32 s%d, 0x%x' % (S_OOB, OOB))
    if rot:
        a('v_and_b32 v%d, 31, v0' % V_T)
        a('v_lshlrev_b32 v%d, 4, v%d' % (V_T, V_T))
        a('v_xor_b32 v%d, 0x100, v%d' % (V_T + 1, V_T))
        a('v_and_b32 v%d, 15, v0' % (V_T + 2))
        a('v_lshlrev_b32 v%d, 4, v%d' % (V_T + 3, V_T + 2))
        a('ds_read_b128 %s, v%d offset:%d' % (v(V_QA, 4), V_T, L_QR))
        a('ds_read_b128 %s, v%d offset:%d' % (v(V_QB, 4), V_T + 1, L_QR))
        a('ds_read_b128 %s, v%d offset:%d' % (v(RH, 4), V_T + 3, L_CT))
        a('ds_read_b128 %s, v%d offset:%d' % (v(RL, 4), V_T + 3, L_CT + 256))
        a('ds_read_b128 %s, v%d offset:%d' % (v(V_C2, 4), V_T + 3, L_CT + 512))
        a('ds_read_b128 %s, v%d offset:%d' % (v(SD, 4), V_T + 3, L_CT + 768))
        a('v_lshlrev_b32 v%d, 5, v%d' % (V_T + 2, V_T + 2))
        a('v_lshrrev_b32 v%d, 4, v0' % (V_T + 4))
        a('v_lshl_add_u32 v%d, v%d, 1, v%d' % (V_T + 2, V_T + 4, V_T + 2))
        a('s_lshl_b32 s%d, s%d, 2' % (S_TMP, S_TMP2))
        a('v_add_u32 v%d, s%d, v%d' % (V_SCB, S_TMP, V_T + 2))
        a('s_lshl_b32 s%d, s%d, 9' % (S_TMP, S_CC))
        a('v_add_u32 v%d, s%d, v%d' % (V_SCA, S_TMP, V_SCB))
        a('ds_read_u16 v%d, v%d offset:%d' % (V_KZN, V_SCA, L_SC))
        a('v_and_b32 v%d, 16, v0' % (V_T + 4))
        a('v_lshlrev_b32 v%d, 27, v%d' % (V_T + 5, V_T + 4))
        a('v_lshrrev_b32 v%d, 5, v0' % V_TI)
        a('s_add_u32 s%d, s%d, s%d' % (S_TMP, S_T0, S_TMP2))
        a('v_add_u32 v%d, s%d, v%d' % (V_TI, S_TMP, V_TI))
        a('s_waitcnt lgkmcnt(0)')
        for j in range(4): a('v_xor_b32 v%d, v%d, v%d' % (V_QB + j, V_T + 5, V_QB + j))
    else:
        QRA, QRB = V_W[1], V_O
        a('v_and_b32 v%d, 31, v0' % V_T)
        a('v_lshlrev_b32 v%d, 4, v%d' % (V_T, V_T))
        a('v_xor_b32 v%d, 0x100, v%d' % (V_T + 1, V_T))
        a('v_and_b32 v%d, 15, v0' % (V_T + 2))
        a('v_lshlrev_b32 v%d, 4, v%d' % (V_T + 3, V_T + 2))
        a('ds_read_b128 %s, v%d offset:%d' % (v(QRA, 4), V_T, L_QR))
        a('ds_read_b128 %s, v%d offset:%d' % (v(QRB, 4), V_T + 1, L_QR))
        a('ds_read_b128 %s, v%d offset:%d' % (v(RH, 4), V_T + 3, L_CT))
        a('ds_read_b128 %s, v%d offset:%d' % (v(RL, 4), V_T + 3, L_CT + 256))
        a('ds_read_b128 %s, v%d offset:%d' % (v(V_C2, 4), V_T + 3, L_CT + 512))
        a('ds_read_b128 %s, v%d offset:%d' % (v(SD, 4), V_T + 3, L_CT + 768))
        a('v_lshlrev_b32 v%d, 5, v%d' % (V_T + 2, V_T + 2))
        a('v_lshrrev_b32 v%d, 4, v0' % (V_T + 4))
        a('v_lshl_add_u32 v%d, v%d, 1, v%d' % (V_T + 2, V_T + 4, V_T + 2))
        a('s_lshl_b32 s%d, s%d, 2' % (S_TMP, S_TMP2))
        a('v_add_u32 v%d, s%d, v%d' % (V_SCA, S_TMP, V_T + 2))
        a('ds_read_u16 v%d, v%d offset:%d' % (V_KZN, V_SCA, L_SC))
        SM, SN, TF = V_T + 4, V_T + 5, V_T + 6
        a('v_and_b32 v%d, 16, v0' % SM)
        a('v_lshlrev_b32 v%d, 27, v%d' % (SN, SM))
        a('v_lshrrev_b32 v%d, 5, v0' % TF)
        a('s_add_u32 s%d, s%d, s%d' % (S_TMP, S_T0, S_TMP2))
        a('v_add_u32 v%d, s%d, v%d' % (TF, S_TMP, TF))
        a('v_cvt_f32_u32 v%d, v%d' % (TF, TF))
        a('s_waitcnt lgkmcnt(0)')
        for j in range(4): a('v_xor_b32 v%d, v%d, v%d' % (QRB + j, SN, QRB + j))
        for j in range(4): a('v_mul_f32 v%d, v%d, v%d' % (RH + j, TF, RH + j))
        for j in range(4): a('v_fract_f32 v%d, v%d' % (RH + j, RH + j))
        for j in range(4): a('v_fmac_f32 v%d, v%d, v%d' % (RH + j, TF, RL + j))
        for j in range(4): a('v_sin_f32 v%d, v%d' % (RL + j, RH + j))
        for j in range(4): a('v_cos_f32 v%d, v%d' % (RH + j, RH + j))
        W0, W1 = V_W
        a('s_nop 0')
        for j in range(4): a('v_mul_f32 v%d, v%d, v%d' % (W0 + j, QRA + j, RH + j))
        for j in range(4): a('v_fmac_f32 v%d, v%d, v%d' % (W0 + j, QRB + j, RL + j))
        for j in range(4): a('v_mul_f32 v%d, v%d, v%d' % (V_S + j, QRB + j, RH + j))
        for j in range(4): a('v_fma_f32 v%d, -v%d, v%d, v%d' % (V_S + j, QRA + j, RL + j, V_S + j))
        for j in range(4): a('v_mul_f32 v%d, v%d, v%d' % (W1 + j, V_C2 + j, W0 + j))
        for j in range(4): a('v_mul_f32 v%d, v%d, v%d' % (V_S + j, SD + j, V_S + j))
        for j in range(4): a('v_fma_f32 v%d, v%d, 0.5, -v%d' % (W1 + j, W1 + j, V_S + j))
    a('v_mov_b32 v%d, 0xff800000' % V_M)
    a('v_mov_b32 v%d, 0' % V_L)
    for j in range(4): a('v_mov_b32 v%d, 0' % (V_O + j))
    a('s_mov_b32 s%d, 0' % S_IT)

    def loop(tag, L):
        plan = {e: [e + L] for e in range(32)}
        if boost:
            b = boost
            seqn = L
            plan = {}
            for e in range(32):
                cnt = 2 if 16 - b <= e < 16 else (0 if 16 <= e < 16 + b else 1)
                plan[e] = list(range(seqn, seqn + cnt)); seqn += cnt
            assert seqn == 32 + L
        def younger(e):
            issued = max([x for ee in range(e) for x in plan[ee]] + [L - 1])
            return issued - e
        def events(e):
            for x in plan[e]:
                if x < pre:
                    a('s_cmp_eq_u32 s%d, 0' % S_IT)
                    a('s_cbranch_scc1 L_skip%s_%d' % (tag, x))
                    big(x, S_CUR)
                    a.label('L_skip%s_%d' % (tag, x))
                elif x < 32:
                    big(x, S_CUR)
                else:
                    big(x - 32, S_NXT)
        a.label('L_chunk' + tag)
        if rot:
            a('s_add_u32 s%d, s%d, 1' % (S_TMP2, S_CC))
            a('s_and_b32 s%d, s%d, 3' % (S_TMP2, S_TMP2))
            a('s_lshl_b32 s%d, s%d, 16' % (S_NXT, S_TMP2))
            a('s_add_u32 s%d, s%d, s%d' % (S_NXT, S_NXT, S_BASE))
            a('s_cmp_eq_u32 s%d, %d' % (S_IT, nch - 1))
            a('s_cselect_b32 s%d, s%d, s%d' % (S_NXT, S_OOB, S_NXT))
            a('s_waitcnt lgkmcnt(0)')
            a('v_lshlrev_b32 v%d, 16, v%d' % (V_KZ, V_KZN))
            a('ds_read_u16 v%d, v%d offset:%d' % (V_KS, V_SCA, L_SC + 2048))
            a('ds_read_u16 v%d, v%d offset:%d' % (V_VS, V_SCA, L_SC + 4096))
            a('ds_read_u16 v%d, v%d offset:%d' % (V_VZ, V_SCA, L_SC + 6144))
            a('s_lshl_b32 s%d, s%d, 9' % (S_TMP, S_TMP2))
            a('v_add_u32 v%d, s%d, v%d' % (V_SCA, S_TMP, V_SCB))
            a('ds_read_u16 v%d, v%d offset:%d' % (V_KZN, V_SCA, L_SC))
            TFv = V_T + 6
            a('s_lshl_b32 s%d, s%d, 7' % (S_TMP, S_CC))
            a('v_add_u32 v%d, s%d, v%d' % (TFv, S_TMP, V_TI))
            a('v_cvt_f32_u32 v%d, v%d' % (TFv, TFv))
            a('s_mov_b32 s%d, s%d' % (S_CC, S_TMP2))
            for j in range(4): a('v_mul_f32 v%d, v%d, v%d' % (V_A + j, TFv, RH + j))
            for j in range(4): a('v_fract_f32 v%d, v%d' % (V_A + j, V_A + j))
            for j in range(4): a('v_fmac_f32 v%d, v%d, v%d' % (V_A + j, TFv, RL + j))
            for j in range(4): a('v_sin_f32 v%d, v%d' % (V_SN + j, V_A + j))
            for j in range(4): a('v_cos_f32 v%d, v%d' % (V_A + j, V_A + j))
            W0_, W1_ = V_W
            a('s_nop 0')
            for j in range(4): a('v_mul_f32 v%d, v%d, v%d' % (W0_ + j, V_QA + j, V_A + j))
            for j in range(4): a('v_fmac_f32 v%d, v%d, v%d' % (W0_ + j, V_QB + j, V_SN + j))
            for j in range(4): a('v_mul_f32 v%d, v%d, v%d' % (V_S + j, V_QB + j, V_A + j))
            for j in range(4): a('v_fma_f32 v%d, -v%d, v%d, v%d' % (V_S + j, V_QA + j, V_SN + j, V_S + j))
            for j in range(4): a('v_mul_f32 v%d, v%d, v%d' % (W1_ + j, V_C2 + j, W0_ + j))
            for j in range(4): a('v_mul_f32 v%d, v%d, v%d' % (V_S + j, SD + j, V_S + j))
            for j in range(4): a('v_fma_f32 v%d, v%d, 0.5, -v%d' % (W1_ + j, W1_ + j, V_S + j))
        else:
            a('s_cmp_eq_u32 s%d, %d' % (S_IT, nch - 1))
            a('s_cselect_b32 s%d, s%d, %d' % (S_NXT, S_OOB, CHUNKB))
            a('s_add_u32 s%d, s%d, s%d' % (S_NXT, S_NXT, S_CUR))
            a('s_waitcnt lgkmcnt(0)')
            a('v_lshlrev_b32 v%d, 16, v%d' % (V_KZ, V_KZN))
            a('ds_read_u16 v%d, v%d offset:%d' % (V_KS, V_SCA, L_SC + 2048))
            a('ds_read_u16 v%d, v%d offset:%d' % (V_VS, V_SCA, L_SC + 4096))
            a('ds_read_u16 v%d, v%d offset:%d' % (V_VZ, V_SCA, L_SC + 6144))
            a('ds_read_u16 v%d, v%d offset:%d' % (V_KZN, V_SCA, L_SC + 512))
            a('v_add_u32 v%d, 0x200, v%d' % (V_SCA, V_SCA))
        for i in range(16):
            K = slot(i)
            cur, prev = V_W[i & 1], V_W[(i + 1) & 1]
            dpp('v_mov_b32_dpp', V_B, V_KZ, None, 'row_newbcast:%d' % i)
            if i >= 8: dpp('v_add_f32_dpp', V_S + i - 8, V_S + i - 8, V_S + i - 8, 'row_mirror', 0x3)
            a('s_waitcnt vmcnt(%d)' % younger(i))
            events(i)
            if i == 0 and stamps:
                a('s_cmp_lg_u32 s%d, 0' % S_IT)
                a('s_cbranch_scc1 L_nost1' + tag)
                stamp(1)
                a.label('L_nost1' + tag)
            for j in range(4): a('v_cvt_f32_i32 v%d, v%d' % (K + j, K + j))
            for j in range(4): a('v_sub_f32 v%d, v%d, v%d' % (K + j, K + j, V_B))
            D = V_S + i if i < 8 else V_TT
            a('v_mul_f32 v%d, v%d, v%d' % (D, K, cur))
            for j in range(1, 4): a('v_fmac_f32 v%d, v%d, v%d' % (D, K + j, cur + j))
            for j in range(4): a('v_fma_f32 v%d, v%d, v%d, -v%d' % (prev + j, V_C2 + j, cur + j, prev + j))
            if i >= 8: dpp('v_add_f32_dpp', V_S + i - 8, V_TT, V_TT, 'row_mirror', 0xc)
        a('s_nop 1')
        for i in range(4): dpp('v_add_f32_dpp', V_S + i, V_S + i, V_S + i, 'row_half_mirror', 0x5)
        for i in range(4): dpp('v_add_f32_dpp', V_S + i, V_S + 4 + i, V_S + 4 + i, 'row_half_mirror', 0xa)
        for i in range(4): dpp('v_add_f32_dpp', V_S + 4 + i, V_S + i, V_S + i, 'quad_perm:[2,3,0,1]')
        a('v_cndmask_b32 v%d, v%d, v%d, s[%d:%d]' % (V_S, V_S + 4, V_S + 6, S_M1, S_M1 + 1))
        a('v_cndmask_b32 v%d, v%d, v%d, s[%d:%d]' % (V_S + 1, V_S + 5, V_S + 7, S_M1, S_M1 + 1))
        a('s_waitcnt lgkmcnt(0)')
        a('v_lshlrev_b32 v%d, 16, v%d' % (V_KS, V_KS))
        dpp('v_add_f32_dpp', V_S + 2, V_S, V_S, 'quad_perm:[1,0,3,2]')
        dpp('v_add_f32_dpp', V_S + 3, V_S + 1, V_S + 1, 'quad_perm:[1,0,3,2]')
        a('v_lshlrev_b32 v%d, 16, v%d' % (V_VS, V_VS))
        a('v_cndmask_b32 v%d, v%d, v%d, s[%d:%d]' % (V_S, V_S + 2, V_S + 3, S_M0, S_M0 + 1))
        LG, X, Y = V_S, V_S + 1, V_S + 2
        a('v_mul_f32 v%d, v%d, v%d' % (LG, LG, V_KS))
        a('v_lshlrev_b32 v%d, 16, v%d' % (V_VZ, V_VZ))
        a('v_mov_b32 v%d, v%d' % (X, LG))
        a('s_nop 1')
        a('v_permlane16_swap_b32 v%d, v%d' % (LG, X))
        a('v_add_f32 v%d, v%d, v%d' % (LG, LG, X))
        a('v_mul_f32 v%d, s%d, v%d' % (LG, S_C, LG))
        a('s_nop 1')
        dpp('v_max_f32_dpp', X, LG, LG, 'row_ror:8')
        for n in (4, 2, 1):
            a('s_nop 1')
            dpp('v_max_f32_dpp', X, X, X, 'row_ror:%d' % n)
        a('v_mov_b32 v%d, v%d' % (Y, X))
        a('s_nop 1')
        a('v_permlane32_swap_b32 v%d, v%d' % (X, Y))
        MN, AL = V_S + 3, V_S + 7
        a('v_max3_f32 v%d, v%d, v%d, v%d' % (MN, X, Y, V_M))
        PP, AA, AZ = V_S + 4, V_S + 5, V_S + 6
        a('v_sub_f32 v%d, v%d, v%d' % (PP, LG, MN))
        a('v_sub_f32 v%d, v%d, v%d' % (AL, V_M, MN))
        a('v_exp_f32 v%d, v%d' % (PP, PP))
        a('v_exp_f32 v%d, v%d' % (AL, AL))
        a('v_mov_b32 v%d, v%d' % (V_M, MN))
        a('v_mul_f32 v%d, v%d, v%d' % (AA, PP, V_VS))
        a('v_mul_f32 v%d, v%d, v%d' % (AZ, AA, V_VZ))
        a('v_fma_f32 v%d, v%d, v%d, v%d' % (V_L, V_L, AL, PP))
        if prel:
            a('v_mov_b32 v%d, v%d' % (V_LR, V_L))
            a('s_nop 0')
            for n in (8, 4, 2, 1):
                dpp('v_add_f32_dpp', AZ, AZ, AZ, 'row_ror:%d' % n)
                dpp('v_add_f32_dpp', V_LR, V_LR, V_LR, 'row_ror:%d' % n)
                a('s_nop 0')
            a('v_mov_b32 v%d, v%d' % (V_LR + 1, V_LR))
            for j in range(4): a('v_fma_f32 v%d, v%d, v%d, -v%d' % (V_O + j, V_O + j, AL, AZ))
            a('v_permlane32_swap_b32 v%d, v%d' % (V_LR, V_LR + 1))
            a('v_add_f32 v%d, v%d, v%d' % (V_LR, V_LR, V_LR + 1))
        else:
            a('s_nop 0')
            for n in (8, 4, 2, 1):
                dpp('v_add_f32_dpp', AZ, AZ, AZ, 'row_ror:%d' % n)
                a('s_nop 1')
            for j in range(4): a('v_fma_f32 v%d, v%d, v%d, -v%d' % (V_O + j, V_O + j, AL, AZ))
        if stamps:
            a('s_cmp_lg_u32 s%d, 0' % S_IT)
            a('s_cbranch_scc1 L_nost2' + tag)
            stamp(2)
            a.label('L_nost2' + tag)
        for i in range(16):
            R = slot(16 + i)
            dpp('v_mov_b32_dpp', V_B, AA, None, 'row_newbcast:%d' % i)
            a('s_waitcnt vmcnt(%d)' % younger(16 + i))
            events(16 + i)
            for j in range(4): a('v_cvt_f32_i32 v%d, v%d' % (R + j, R + j))
            for j in range(4): a('v_fmac_f32 v%d, v%d, v%d' % (V_O + j, V_B, R + j))
        a('s_mov_b32 s%d, s%d' % (S_CUR, S_NXT))
        a('s_add_u32 s%d, s%d, 1' % (S_IT, S_IT))
        a('s_cmp_lt_u32 s%d, %d' % (S_IT, nch))
        a('s_cbranch_scc1 L_chunk' + tag)
    if parity and le != lo:
        a.comment('workgroups on odd XCDs keep more loads in flight (they are served more slowly when the memory system is saturated)')
        a('s_getreg_b32 s%d, hwreg(HW_REG_XCC_ID, 0, 1)' % S_TMP)
        a('s_cmp_eq_u32 s%d, 1' % S_TMP)
        a('s_cbranch_scc1 L_odd')
        loop('e', le)
        a('s_branch L_done')
        a.label('L_odd')
        loop('o', lo)
        a.label('L_done')
    else:
        loop('e', le)
    stamp(3)
    E = V_T + 3
    if prel:
        a('v_mov_b32 v%d, v%d' % (E + 3, V_M))
        a('v_mov_b32 v%d, v%d' % (E + 2, V_LR))
        a('v_permlane32_swap_b32 v%d, v%d' % (V_O, V_O + 2))
        a('v_permlane32_swap_b32 v%d, v%d' % (V_O + 1, V_O + 3))
        a('s_lshl_b32 s%d, s%d, 10' % (S_TMP, S_WAVE))
        a('v_add_u32 v%d, s%d, v%d' % (V_T, S_TMP, V_O16))
        a('v_add_f32 v%d, v%d, v%d' % (E, V_O, V_O + 2))
        a('v_add_f32 v%d, v%d, v%d' % (E + 1, V_O + 1, V_O + 3))
    else:
        a('v_mov_b32 v%d, v%d' % (E + 3, V_M))
        for n in (8, 4, 2, 1):
            dpp('v_add_f32_dpp', V_L, V_L, V_L, 'row_ror:%d' % n)
            if n == 8: a('v_permlane32_swap_b32 v%d, v%d' % (V_O, V_O + 2))
            elif n == 4: a('v_permlane32_swap_b32 v%d, v%d' % (V_O + 1, V_O + 3))
            elif n == 2: a('v_add_f32 v%d, v%d, v%d' % (E, V_O, V_O + 2))
            else: a('v_add_f32 v%d, v%d, v%d' % (E + 1, V_O + 1, V_O + 3))
            a('s_nop 0')
        a('v_mov_b32 v%d, v%d' % (E + 2, V_L))
        a('s_lshl_b32 s%d, s%d, 10' % (S_TMP, S_WAVE))
        a('v_add_u32 v%d, s%d, v%d' % (V_T, S_TMP, V_O16))
        a('v_permlane32_swap_b32 v%d, v%d' % (V_L, E + 2))
        a('v_add_f32 v%d, v%d, v%d' % (E + 2, E + 2, V_L))
    a('ds_write_b128 v%d, %s offset:%d' % (V_T, v(E, 4), L_REC))
    a('s_waitcnt lgkmcnt(0)')
    a('s_cmp_lg_u32 s%d, 0' % S_WAVE)
    a('s_cbranch_scc1 L_others')
    V_C1K, V_O8, V_OUT = V_T, V_T + 1, V_T + 2
    a('v_and_b32 v%d, 15, v0' % V_C1K)
    a('v_lshlrev_b32 v%d, 10, v%d' % (V_C1K, V_C1K))
    a('v_lshlrev_b32 v%d, 3, v0' % V_O8)
    a('v_and_b32 v%d, 31, v0' % V_OUT)
    a('v_lshlrev_b32 v%d, 3, v%d' % (V_OUT, V_OUT))
    a('v_lshrrev_b32 v%d, 5, v0' % V_B)
    a('v_lshl_add_u32 v%d, v%d, 2, v%d' % (V_OUT, V_B, V_OUT))
    a('s_barrier')
    stamp(4)
    if stamps: a('s_waitcnt lgkmcnt(0)')
    Q = lambda w: V_X + 4 * w
    for w in range(4): a('ds_read_b128 %s, v%d offset:%d' % (v(Q(w), 4), V_O16, L_REC + 1024 * w))
    a('s_waitcnt lgkmcnt(1)')
    a('v_max3_f32 v%d, v%d, v%d, v%d' % (E + 3, Q(0) + 3, Q(1) + 3, Q(2) + 3))
    a('s_waitcnt lgkmcnt(0)')
    a('v_max_f32 v%d, v%d, v%d' % (E + 3, E + 3, Q(3) + 3))
    for w in range(4): a('v_sub_f32 v%d, v%d, v%d' % (Q(w) + 3, Q(w) + 3, E + 3))
    for w in range(4): a('v_exp_f32 v%d, v%d' % (Q(w) + 3, Q(w) + 3))
    a('s_nop 0')
    for j in range(3): a('v_mul_f32 v%d, v%d, v%d' % (E + j, Q(0) + j, Q(0) + 3))
    for w in range(1, 4):
        for j in range(3): a('v_fmac_f32 v%d, v%d, v%d' % (E + j, Q(w) + j, Q(w) + 3))
    stamp(5)
    a('s_lshl_b32 s%d, s%d, 10' % (S_TMP, S_REG))
    a('buffer_store_dwordx2 %s, v%d, %s, s%d offen sc1' % (v(E, 2), V_O8, srd('ws'), S_TMP))
    a('s_mov_b64 exec, 0xffff')
    a('buffer_store_dwordx2 %s, v%d, %s, s%d offen offset:512 sc1' % (v(E + 2, 2), V_O8, srd('ws'), S_TMP))
    a('s_mov_b64 exec, 1')
    a('s_waitcnt vmcnt(0)')
    stamp(6)
    a('v_mov_b32 v%d, 1' % V_B)
    a('s_lshl_b32 s%d, s%d, 4' % (S_TMP, S_HEAD))
    a('buffer_atomic_add v%d, off, %s, s%d sc0 sc1' % (V_B, srd('dbg'), S_TMP))
    a('s_mov_b64 exec, -1')
    a('s_lshl_b32 s%d, s%d, 14' % (S_REG, S_HEAD))
    a('s_waitcnt vmcnt(0)')
    a('v_readfirstlane_b32 s%d, v%d' % (S_TMP2, V_B))
    stamp(7)
    a('s_nop 3')
    a('s_cmp_lg_u32 s%d, 15' % S_TMP2)
    a('s_cbranch_scc1 L_notlast' if stamps else 's_cbranch_scc1 L_end')
    LM = V_S
    R = lambda i: V_SLOT + 2 * i
    a('buffer_load_dwordx2 %s, v%d, %s, s%d offen offset:512 sc1' % (v(LM, 2), V_C1K, srd('ws'), S_REG))
    for i in range(16):
        if i % 4 == 0: a('s_add_u32 s%d, s%d, %d' % (S_TMP, S_REG, (i // 4) * 4096))
        a('buffer_load_dwordx2 %s, v%d, %s, s%d offen offset:%d sc1' % (v(R(i), 2), V_O8, srd('ws'), S_TMP, (i % 4) * 1024))
    a('s_waitcnt vmcnt(16)')
    stamp(8)
    F, M_ = V_S + 2, E + 3
    dpp('v_max_f32_dpp', M_, LM + 1, LM + 1, 'row_ror:8')
    for n in (4, 2, 1):
        a('s_nop 1')
        dpp('v_max_f32_dpp', M_, M_, M_, 'row_ror:%d' % n)
    a('v_sub_f32 v%d, v%d, v%d' % (F, LM + 1, M_))
    a('v_exp_f32 v%d, v%d' % (F, F))
    a('s_nop 0')
    a('v_mul_f32 v%d, v%d, v%d' % (E + 2, LM, F))
    a('v_mov_b32 v%d, 0' % E)
    a('v_mov_b32 v%d, 0' % (E + 1))
    for i in range(16):
        a('s_waitcnt vmcnt(%d)' % (15 - i))
        dpp('v_fmac_f32_dpp', E, F, R(i), 'row_newbcast:%d' % i)
        dpp('v_fmac_f32_dpp', E + 1, F, R(i) + 1, 'row_newbcast:%d' % i)
        if i in (0, 2, 4, 6): dpp('v_add_f32_dpp', E + 2, E + 2, E + 2, 'row_ror:%d' % (8 >> (i // 2)))
    stamp(9)
    a('v_rcp_f32 v%d, v%d' % (E + 2, E + 2))
    a('s_nop 0')
    a('v_mul_f32 v%d, v%d, v%d' % (E, E, E + 2))
    a('v_mul_f32 v%d, v%d, v%d' % (E + 1, E + 1, E + 2))
    a('v_cvt_pk_bf16_f32 v%d, v%d, v%d' % (E, E, E + 1))
    a('buffer_store_dword v%d, v%d, %s, s%d offen' % (E, V_OUT, srd('out'), S_QOFF))
    if stamps:
        a('s_waitcnt vmcnt(0)')
        stamp(10)
        flush_stamps(10)
        a('s_endpgm')
        a.label('L_notlast')
        flush_stamps(7)
    a('s_endpgm')
    a.label('L_others')
    a('s_barrier')
    a.label('L_end')
    a('s_endpgm')
    rh, rl, c2, sd = rope_tables(8)
    a.lines.append('.p2align 6')
    a.lines.append('.type rope_consts,@object')
    a.lines.append('rope_consts:')
    for tab in (rh, rl, c2, sd):
        for b in range(0, 64, 8):
            a.lines.append('    .long ' + ', '.join('0x%08x' % x for x in tab[b:b + 8]))
    a.lines.append('.size rope_consts, 1024')
    launch = '; @launch grid=(256,1,1) block=(256,1,1) lds=%d' % lds
    notes = '''; Single-query attention over a quantised KV cache: 256 workgroups (16 heads x 16 ranges of 512 tokens) x 4 waves.
; * a wave walks 128 tokens in 4 chunks of 32 (two tokens per load, %d loads in flight): dequantise K, dot with the
;   position-rotated query, online softmax (true running maximum), weighted sum of the dequantised V; waves and
;   workgroups are merged with the usual max / rescale rule.
; * RoPE on K is applied on the query side (same bilinear form). k_cos / k_sin are the constant tables
;   cos / sin(t * 10000^(-f/64)); they are regenerated from the 64 inverse frequencies (table rope_consts at the end
;   of this file: revolutions per token split hi + lo, 2 cos(8 f), sin(8 f)) instead of being streamed.
; * cross-workgroup hand-off: record in d_ws with write-through stores, arrival counter per head in d_debug,
;   the workgroup whose add comes last reads the 16 records and writes the output.
; * the LDS size keeps it at one workgroup per CU.
''' % le
    if bigv: return wrap(a.text(), launch, 264, accum=256, notes=notes)
    return wrap(a.text(), launch, NV, notes=notes)

if __name__ == '__main__':
    kw = {}
    for arg in sys.argv[2:]:
        k, val = arg.split('=')
        kw[k] = int(val) if val.lstrip('-').isdigit() else val
    open(sys.argv[1], 'w').write(gen(**kw))
```

```python
import sys, math
from asmlib import *
from consts import rope_tables, f2u

OOB = 0x7c000000

def gen(kv_flags='nt', le=6, lo=10, first=3, stamps=0, lds=90112, boost=0, nch=4, parity=1, rot='', ring=16, pre=16, bigv=0, prel=0, numa=0):
    a = Asm()
    S_WAVE, S_CUR, S_NXT, S_IT = 3, 4, 5, 6
    S_TBL = 8
    S_QOFF, S_HEAD, S_TMP, S_T0, S_TMP2, S_REG = 10, 11, 12, 13, 14, 15
    SRD = dict(qk=44, qv=48, q=68, qcos=72, qsin=76, out=80, ws=84, dbg=88)
    karg = dict(q=16, qk=18, ks=20, kz=22, qv=24, vs=26, vz=28, qcos=30, qsin=32, out=38, dbg=40, ws=42)
    size = dict(qk=1 << 26, qv=1 << 26, q=4096, qcos=256, qsin=256, out=4096, ws=1 << 21, dbg=256)
    S_M1, S_M0, S_C, S_OOB = 16, 18, 22, 23
    S_SC = 92
    def srd(n): return s(SRD[n], 4)
    V_O16, V_SCA = 1, 2
    V_KZ, V_KS, V_VS, V_VZ, V_B = 3, 4, 5, 6, 7
    V_W = [8, 12]; V_C2 = 16; V_O = 20
    V_S = 24; V_TT = 32
    V_T = 33
    V_M, V_L, V_KZN = 40, 41, 42
    V_LR = 56
    V_X = 44
    V_QA, V_QB, V_TI, V_SCB = 60, 64, 68, 69
    V_A, V_SN = 72, 76
    V_SLOT = 80 if rot else 60
    S_CC, S_BASE = 7, 96
    NV = V_SLOT + 4 * ring
    def slot(x): return V_SLOT + 4 * (x % ring)
    assert max(le, lo) + boost < ring and pre <= ring and pre >= max(le, lo)
    L_SC, L_QR, L_CT, L_REC = 0, 8192, 8704, 10240
    STEPB = 4096; CHUNKB = 16 * STEPB
    NST = 12
    def stamp(k):
        if stamps:
            r = 100 if k == 0 else 24 + 2 * (k - 1)
            a('s_memrealtime s[%d:%d]' % (r, r + 1))
    def flush_stamps(k_last):
        if not stamps: return
        a('s_waitcnt lgkmcnt(0)')
        a('s_mul_i32 s13, s2, %d' % (NST * 4))
        a('s_add_u32 s13, s13, 0x100000')
        a('s_mov_b64 exec, 1')
        a('s_getreg_b32 s8, hwreg(HW_REG_XCC_ID)')
        for k in range(NST):
            k2 = min(k, k_last)
            r = 100 if k2 == 0 else 24 + 2 * (k2 - 1)
            if k == NST - 1: r = 8
            a('v_mov_b32 v%d, s%d' % (V_T + 6, r))
            a('buffer_store_dword v%d, off, %s, s13 offset:%d' % (V_T + 6, srd('ws'), 4 * k))
            a('s_nop 1')
        a('s_mov_b64 exec, -1')
    def dpp(op, d, s0, s1, ctrl, bank=0xf):
        if s1 is None: a('%s v%d, v%d %s row_mask:0xf bank_mask:0x%x' % (op, d, s0, ctrl, bank))
        else: a('%s v%d, v%d, v%d %s row_mask:0xf bank_mask:0x%x' % (op, d, s0, s1, ctrl, bank))
    def big(x, base):
        i = x % 16
        if i == 0:
            so = 's%d' % base
        else:
            a('s_add_u32 s%d, s%d, %d' % (S_TMP, base, i * STEPB)); so = 's%d' % S_TMP
        a('buffer_load_dwordx4 %s, v%d, %s, %s offen %s' % (v(slot(x), 4), V_O16, srd('qk' if x < 16 else 'qv'), so, kv_flags))

    a('s_cmp_ge_u32 s2, 256')
    a('s_cbranch_scc1 L_end')
    stamp(0)
    a('s_load_dwordx16 s[16:31], s[0:1], 0')
    a('s_load_dwordx8 s[32:39], s[0:1], 64')
    a('s_load_dwordx4 s[40:43], s[0:1], 96')
    a('v_lshrrev_b32 v1, 6, v0')
    a('v_and_b32 v0, 63, v0')
    a('v_readfirstlane_b32 s%d, v1' % S_WAVE)
    a('v_lshlrev_b32 v%d, 4, v0' % V_O16)
    a('s_and_b32 s%d, s2, 7' % S_TMP)
    a('s_lshl_b32 s%d, s%d, 5' % (S_TMP, S_TMP))
    a('s_lshr_b32 s%d, s2, 3' % S_T0)
    a('s_add_u32 s%d, s%d, s%d' % (S_REG, S_TMP, S_T0))
    a('s_lshr_b32 s%d, s%d, 4' % (S_HEAD, S_REG))
    a('s_lshl_b32 s%d, s%d, 18' % (S_CUR, S_REG))
    a('s_lshl_b32 s%d, s%d, 10' % (S_TMP, S_WAVE))
    a('s_add_u32 s%d, s%d, s%d' % (S_CUR, S_CUR, S_TMP))
    if rot:
        a.comment('the four 128-token chunks of the region are walked starting from chunk (wg + (wg >> 3)) & 3, so that neighbours are out of phase')
        a('s_mov_b32 s%d, s%d' % (S_BASE, S_CUR))
        a('s_lshr_b32 s%d, s2, 3' % S_CC)
        if rot == 'xs': a('s_add_u32 s%d, s%d, s2' % (S_CC, S_CC))
        elif rot == 'xor': a('s_xor_b32 s%d, s%d, s2' % (S_CC, S_CC))
        elif rot == 'x2s':
            a('s_lshr_b32 s%d, s2, 1' % S_TMP); a('s_and_b32 s%d, s%d, 3' % (S_TMP, S_TMP)); a('s_add_u32 s%d, s%d, s%d' % (S_CC, S_CC, S_TMP))
        elif rot == 'x4s':
            a('s_lshr_b32 s%d, s2, 2' % S_TMP); a('s_and_b32 s%d, s%d, 1' % (S_TMP, S_TMP)); a('s_lshl_b32 s%d, s%d, 1' % (S_TMP, S_TMP))
            a('s_add_u32 s%d, s%d, s%d' % (S_CC, S_CC, S_TMP)); a('s_add_u32 s%d, s%d, s2' % (S_CC, S_CC))
        a('s_and_b32 s%d, s%d, 3' % (S_CC, S_CC))
        a('s_lshl_b32 s%d, s%d, 16' % (S_TMP, S_CC))
        a('s_add_u32 s%d, s%d, s%d' % (S_CUR, S_CUR, S_TMP))
    for n in ('qk', 'qv'):
        a('s_mov_b32 s%d, 0x%x' % (SRD[n] + 2, size[n]))
        a('s_mov_b32 s%d, 0x00020000' % (SRD[n] + 3))
    a('s_and_b32 s%d, s%d, 15' % (S_T0, S_REG))
    a('s_lshl_b32 s%d, s%d, 9' % (S_T0, S_T0))
    a('s_lshl_b32 s%d, s%d, 1' % (S_TMP2, S_WAVE))
    a('s_lshl_b32 s%d, s%d, 8' % (S_QOFF, S_HEAD))
    a('s_getpc_b64 s[%d:%d]' % (S_TBL, S_TBL + 1))
    a.label('L_pc')
    a('s_add_u32 s%d, s%d, rope_consts-L_pc' % (S_TBL, S_TBL))
    a('s_addc_u32 s%d, s%d, 0' % (S_TBL + 1, S_TBL + 1))
    a('s_waitcnt lgkmcnt(0)')
    def mksrd(n, full=True):
        a('s_mov_b64 s[%d:%d], s[%d:%d]' % (SRD[n], SRD[n] + 1, karg[n], karg[n] + 1))
        if full:
            a('s_mov_b32 s%d, 0x%x' % (SRD[n] + 2, size[n]))
            a('s_mov_b32 s%d, 0x00020000' % (SRD[n] + 3))
    mksrd('qk', False); mksrd('qv', False)
    for x in range(first): big(x, S_CUR)
    a('s_cmp_eq_u32 s%d, 0' % S_WAVE)
    a('s_cselect_b32 s%d, s%d, s%d' % (S_SC, karg['kz'], karg['ks']))
    a('s_cselect_b32 s%d, s%d, s%d' % (S_SC + 1, karg['kz'] + 1, karg['ks'] + 1))
    a('s_cmp_eq_u32 s%d, 2' % S_WAVE)
    a('s_cselect_b32 s%d, s%d, s%d' % (S_SC, karg['vs'], S_SC))
    a('s_cselect_b32 s%d, s%d, s%d' % (S_SC + 1, karg['vs'] + 1, S_SC + 1))
    a('s_cmp_eq_u32 s%d, 3' % S_WAVE)
    a('s_cselect_b32 s%d, s%d, s%d' % (S_SC, karg['vz'], S_SC))
    a('s_cselect_b32 s%d, s%d, s%d' % (S_SC + 1, karg['vz'] + 1, S_SC + 1))
    a('s_mov_b32 s%d, 0x%x' % (S_SC + 2, 1 << 19))
    a('s_mov_b32 s%d, 0x00020000' % (S_SC + 3))
    a('s_lshl_b32 s%d, s%d, 11' % (S_TMP, S_WAVE))
    a('s_mov_b32 m0, s%d' % S_TMP)
    a('s_lshl_b32 s%d, s%d, 11' % (S_TMP, S_REG))
    a('buffer_load_dwordx4 v%d, %s, s%d offen lds' % (V_O16, s(S_SC, 4), S_TMP))
    a('buffer_load_dwordx4 v%d, %s, s%d offen offset:1024 lds' % (V_O16, s(S_SC, 4), S_TMP))
    QA, QB, CA, SA = V_S, V_S + 1, V_S + 2, V_S + 3
    RH, RL, SD = V_X, V_X + 4, V_X + 8
    mksrd('q'); mksrd('qcos'); mksrd('qsin')
    a('s_lshl_b32 s%d, s%d, 6' % (S_TMP, S_WAVE))
    a('v_add_u32 v%d, s%d, v0' % (V_T, S_TMP))
    a('v_lshlrev_b32 v%d, 1, v%d' % (V_T + 1, V_T))
    a('v_xor_b32 v%d, 0x80, v%d' % (V_T + 2, V_T + 1))
    a('s_cmp_ge_u32 s%d, 2' % S_WAVE)
    a('s_cbranch_scc1 L_noqld')
    a('buffer_load_ushort v%d, v%d, %s, s%d offen' % (QA, V_T + 1, srd('q'), S_QOFF))
    a('buffer_load_ushort v%d, v%d, %s, s%d offen' % (QB, V_T + 2, srd('q'), S_QOFF))
    a('buffer_load_ushort v%d, v%d, %s, 0 offen' % (CA, V_T + 1, srd('qcos')))
    a('buffer_load_ushort v%d, v%d, %s, 0 offen' % (SA, V_T + 1, srd('qsin')))
    a.label('L_noqld')
    a('s_cmp_lg_u32 s%d, 2' % S_WAVE)
    a('s_cbranch_scc1 L_nocld')
    a('global_load_dwordx4 %s, v%d, s[%d:%d]' % (v(RH, 4), V_O16, S_TBL, S_TBL + 1))
    a.label('L_nocld')
    for x in range(first, pre): big(x, S_CUR)
    a('s_waitcnt vmcnt(%d)' % (pre - first))
    T0, T1 = V_T + 3, V_T + 4
    for r in (QA, QB, CA, SA): a('v_lshlrev_b32 v%d, 16, v%d' % (r, r))
    a('s_cmp_eq_u32 s%d, 0' % S_WAVE)
    a('s_cselect_b32 s%d, 0x80000000, 0' % S_TMP)
    a('v_mul_f32 v%d, v%d, v%d' % (T0, QA, CA))
    a('v_xor_b32 v%d, s%d, v%d' % (QB, S_TMP, QB))
    a('v_mul_f32 v%d, v%d, v%d' % (T1, QB, SA))
    a('v_cvt_pk_bf16_f32 v%d, v%d, v%d' % (T0, T0, T1))
    a('v_lshlrev_b32 v%d, 16, v%d' % (T1, T0))
    a('v_and_b32 v%d, 0xffff0000, v%d' % (T0, T0))
    a('v_add_f32 v%d, v%d, v%d' % (T0, T0, T1))
    a('v_cvt_pk_bf16_f32 v%d, v%d, v%d' % (T0, T0, T0))
    a('v_lshlrev_b32 v%d, 16, v%d' % (T0, T0))
    a('v_lshlrev_b32 v%d, 2, v%d' % (V_T, V_T))
    a('s_cmp_ge_u32 s%d, 2' % S_WAVE)
    a('s_cbranch_scc1 L_noq')
    a('ds_write_b32 v%d, v%d offset:%d' % (V_T, T0, L_QR))
    a.label('L_noq')
    a('s_cmp_lg_u32 s%d, 2' % S_WAVE)
    a('s_cbranch_scc1 L_noc')
    a('ds_write_b128 v%d, %s offset:%d' % (V_O16, v(RH, 4), L_CT))
    a.label('L_noc')
    a('s_waitcnt lgkmcnt(0)')
    a('s_barrier')
    for n in ('out', 'ws', 'dbg'): mksrd(n)
    for r, val in ((S_M1, 0xcccccccc), (S_M0, 0xaaaaaaaa)):
        a('s_mov_b32 s%d, 0x%x' % (r, val)); a('s_mov_b32 s%d, 0x%x' % (r + 1, val))
    a('s_mov_b32 s%d, 0x%08x' % (S_C, f2u((128.0 ** -0.5) * math.log2(math.e))))
    a('s_mov_b32 s%d, 0x%x' % (S_OOB, OOB))
    if rot:
        a('v_and_b32 v%d, 31, v0' % V_T)
        a('v_lshlrev_b32 v%d, 4, v%d' % (V_T, V_T))
        a('v_xor_b32 v%d, 0x100, v%d' % (V_T + 1, V_T))
        a('v_and_b32 v%d, 15, v0' % (V_T + 2))
        a('v_lshlrev_b32 v%d, 4, v%d' % (V_T + 3, V_T + 2))
        a('ds_read_b128 %s, v%d offset:%d' % (v(V_QA, 4), V_T, L_QR))
        a('ds_read_b128 %s, v%d offset:%d' % (v(V_QB, 4), V_T + 1, L_QR))
        a('ds_read_b128 %s, v%d offset:%d' % (v(RH, 4), V_T + 3, L_CT))
        a('ds_read_b128 %s, v%d offset:%d' % (v(RL, 4), V_T + 3, L_CT + 256))
        a('ds_read_b128 %s, v%d offset:%d' % (v(V_C2, 4), V_T + 3, L_CT + 512))
        a('ds_read_b128 %s, v%d offset:%d' % (v(SD, 4), V_T + 3, L_CT + 768))
        a('v_lshlrev_b32 v%d, 5, v%d' % (V_T + 2, V_T + 2))
        a('v_lshrrev_b32 v%d, 4, v0' % (V_T + 4))
        a('v_lshl_add_u32 v%d, v%d, 1, v%d' % (V_T + 2, V_T + 4, V_T + 2))
        a('s_lshl_b32 s%d, s%d, 2' % (S_TMP, S_TMP2))
        a('v_add_u32 v%d, s%d, v%d' % (V_SCB, S_TMP, V_T + 2))
        a('s_lshl_b32 s%d, s%d, 9' % (S_TMP, S_CC))
        a('v_add_u32 v%d, s%d, v%d' % (V_SCA, S_TMP, V_SCB))
        a('ds_read_u16 v%d, v%d offset:%d' % (V_KZN, V_SCA, L_SC))
        a('v_and_b32 v%d, 16, v0' % (V_T + 4))
        a('v_lshlrev_b32 v%d, 27, v%d' % (V_T + 5, V_T + 4))
        a('v_lshrrev_b32 v%d, 5, v0' % V_TI)
        a('s_add_u32 s%d, s%d, s%d' % (S_TMP, S_T0, S_TMP2))
        a('v_add_u32 v%d, s%d, v%d' % (V_TI, S_TMP, V_TI))
        a('s_waitcnt lgkmcnt(0)')
        for j in range(4): a('v_xor_b32 v%d, v%d, v%d' % (V_QB + j, V_T + 5, V_QB + j))
    else:
        QRA, QRB = V_W[1], V_O
        a('v_and_b32 v%d, 31, v0' % V_T)
        a('v_lshlrev_b32 v%d, 4, v%d' % (V_T, V_T))
        a('v_xor_b32 v%d, 0x100, v%d' % (V_T + 1, V_T))
        a('v_and_b32 v%d, 15, v0' % (V_T + 2))
        a('v_lshlrev_b32 v%d, 4, v%d' % (V_T + 3, V_T + 2))
        a('ds_read_b128 %s, v%d offset:%d' % (v(QRA, 4), V_T, L_QR))
        a('ds_read_b128 %s, v%d offset:%d' % (v(QRB, 4), V_T + 1, L_QR))
        a('ds_read_b128 %s, v%d offset:%d' % (v(RH, 4), V_T + 3, L_CT))
        a('ds_read_b128 %s, v%d offset:%d' % (v(RL, 4), V_T + 3, L_CT + 256))
        a('ds_read_b128 %s, v%d offset:%d' % (v(V_C2, 4), V_T + 3, L_CT + 512))
        a('ds_read_b128 %s, v%d offset:%d' % (v(SD, 4), V_T + 3, L_CT + 768))
        a('v_lshlrev_b32 v%d, 5, v%d' % (V_T + 2, V_T + 2))
        a('v_lshrrev_b32 v%d, 4, v0' % (V_T + 4))
        a('v_lshl_add_u32 v%d, v%d, 1, v%d' % (V_T + 2, V_T + 4, V_T + 2))
        a('s_lshl_b32 s%d, s%d, 2' % (S_TMP, S_TMP2))
        a('v_add_u32 v%d, s%d, v%d' % (V_SCA, S_TMP, V_T + 2))
        a('ds_read_u16 v%d, v%d offset:%d' % (V_KZN, V_SCA, L_SC))
        SM, SN, TF = V_T + 4, V_T + 5, V_T + 6
        a('v_and_b32 v%d, 16, v0' % SM)
        a('v_lshlrev_b32 v%d, 27, v%d' % (SN, SM))
        a('v_lshrrev_b32 v%d, 5, v0' % TF)
        a('s_add_u32 s%d, s%d, s%d' % (S_TMP, S_T0, S_TMP2))
        a('v_add_u32 v%d, s%d, v%d' % (TF, S_TMP, TF))
        a('v_cvt_f32_u32 v%d, v%d' % (TF, TF))
        a('s_waitcnt lgkmcnt(0)')
        for j in range(4): a('v_xor_b32 v%d, v%d, v%d' % (QRB + j, SN, QRB + j))
        for j in range(4): a('v_mul_f32 v%d, v%d, v%d' % (RH + j, TF, RH + j))
        for j in range(4): a('v_fract_f32 v%d, v%d' % (RH + j, RH + j))
        for j in range(4): a('v_fmac_f32 v%d, v%d, v%d' % (RH + j, TF, RL + j))
        for j in range(4): a('v_sin_f32 v%d, v%d' % (RL + j, RH + j))
        for j in range(4): a('v_cos_f32 v%d, v%d' % (RH + j, RH + j))
        W0, W1 = V_W
        a('s_nop 0')
        for j in range(4): a('v_mul_f32 v%d, v%d, v%d' % (W0 + j, QRA + j, RH + j))
        for j in range(4): a('v_fmac_f32 v%d, v%d, v%d' % (W0 + j, QRB + j, RL + j))
        for j in range(4): a('v_mul_f32 v%d, v%d, v%d' % (V_S + j, QRB + j, RH + j))
        for j in range(4): a('v_fma_f32 v%d, -v%d, v%d, v%d' % (V_S + j, QRA + j, RL + j, V_S + j))
        for j in range(4): a('v_mul_f32 v%d, v%d, v%d' % (W1 + j, V_C2 + j, W0 + j))
        for j in range(4): a('v_mul_f32 v%d, v%d, v%d' % (V_S + j, SD + j, V_S + j))
        for j in range(4): a('v_fma_f32 v%d, v%d, 0.5, -v%d' % (W1 + j, W1 + j, V_S + j))
    a('v_mov_b32 v%d, 0xff800000' % V_M)
    a('v_mov_b32 v%d, 0' % V_L)
    for j in range(4): a('v_mov_b32 v%d, 0' % (V_O + j))
    a('s_mov_b32 s%d, 0' % S_IT)

    def loop(tag, L):
        plan = {e: [e + L] for e in range(32)}
        if boost:
            b = boost
            seqn = L
            plan = {}
            for e in range(32):
                cnt = 2 if 16 - b <= e < 16 else (0 if 16 <= e < 16 + b else 1)
                plan[e] = list(range(seqn, seqn + cnt)); seqn += cnt
            assert seqn == 32 + L
        def younger(e):
            issued = max([x for ee in range(e) for x in plan[ee]] + [L - 1])
            return issued - e
        def events(e):
            for x in plan[e]:
                if x < pre:
                    a('s_cmp_eq_u32 s%d, 0' % S_IT)
                    a('s_cbranch_scc1 L_skip%s_%d' % (tag, x))
                    big(x, S_CUR)
                    a.label('L_skip%s_%d' % (tag, x))
                elif x < 32:
                    big(x, S_CUR)
                else:
                    big(x - 32, S_NXT)
        a.label('L_chunk' + tag)
        if rot:
            a('s_add_u32 s%d, s%d, 1' % (S_TMP2, S_CC))
            a('s_and_b32 s%d, s%d, 3' % (S_TMP2, S_TMP2))
            a('s_lshl_b32 s%d, s%d, 16' % (S_NXT, S_TMP2))
            a('s_add_u32 s%d, s%d, s%d' % (S_NXT, S_NXT, S_BASE))
            a('s_cmp_eq_u32 s%d, %d' % (S_IT, nch - 1))
            a('s_cselect_b32 s%d, s%d, s%d' % (S_NXT, S_OOB, S_NXT))
            a('s_waitcnt lgkmcnt(0)')
            a('v_lshlrev_b32 v%d, 16, v%d' % (V_KZ, V_KZN))
            a('ds_read_u16 v%d, v%d offset:%d' % (V_KS, V_SCA, L_SC + 2048))
            a('ds_read_u16 v%d, v%d offset:%d' % (V_VS, V_SCA, L_SC + 4096))
            a('ds_read_u16 v%d, v%d offset:%d' % (V_VZ, V_SCA, L_SC + 6144))
            a('s_lshl_b32 s%d, s%d, 9' % (S_TMP, S_TMP2))
            a('v_add_u32 v%d, s%d, v%d' % (V_SCA, S_TMP, V_SCB))
            a('ds_read_u16 v%d, v%d offset:%d' % (V_KZN, V_SCA, L_SC))
            TFv = V_T + 6
            a('s_lshl_b32 s%d, s%d, 7' % (S_TMP, S_CC))
            a('v_add_u32 v%d, s%d, v%d' % (TFv, S_TMP, V_TI))
            a('v_cvt_f32_u32 v%d, v%d' % (TFv, TFv))
            a('s_mov_b32 s%d, s%d' % (S_CC, S_TMP2))
            for j in range(4): a('v_mul_f32 v%d, v%d, v%d' % (V_A + j, TFv, RH + j))
            for j in range(4): a('v_fract_f32 v%d, v%d' % (V_A + j, V_A + j))
            for j in range(4): a('v_fmac_f32 v%d, v%d, v%d' % (V_A + j, TFv, RL + j))
            for j in range(4): a('v_sin_f32 v%d, v%d' % (V_SN + j, V_A + j))
            for j in range(4): a('v_cos_f32 v%d, v%d' % (V_A + j, V_A + j))
            W0_, W1_ = V_W
            a('s_nop 0')
            for j in range(4): a('v_mul_f32 v%d, v%d, v%d' % (W0_ + j, V_QA + j, V_A + j))
            for j in range(4): a('v_fmac_f32 v%d, v%d, v%d' % (W0_ + j, V_QB + j, V_SN + j))
            for j in range(4): a('v_mul_f32 v%d, v%d, v%d' % (V_S + j, V_QB + j, V_A + j))
            for j in range(4): a('v_fma_f32 v%d, -v%d, v%d, v%d' % (V_S + j, V_QA + j, V_SN + j, V_S + j))
            for j in range(4): a('v_mul_f32 v%d, v%d, v%d' % (W1_ + j, V_C2 + j, W0_ + j))
            for j in range(4): a('v_mul_f32 v%d, v%d, v%d' % (V_S + j, SD + j, V_S + j))
            for j in range(4): a('v_fma_f32 v%d, v%d, 0.5, -v%d' % (W1_ + j, W1_ + j, V_S + j))
        else:
            a('s_cmp_eq_u32 s%d, %d' % (S_IT, nch - 1))
            a('s_cselect_b32 s%d, s%d, %d' % (S_NXT, S_OOB, CHUNKB))
            a('s_add_u32 s%d, s%d, s%d' % (S_NXT, S_NXT, S_CUR))
            a('s_waitcnt lgkmcnt(0)')
            a('v_lshlrev_b32 v%d, 16, v%d' % (V_KZ, V_KZN))
            a('ds_read_u16 v%d, v%d offset:%d' % (V_KS, V_SCA, L_SC + 2048))
            a('ds_read_u16 v%d, v%d offset:%d' % (V_VS, V_SCA, L_SC + 4096))
            a('ds_read_u16 v%d, v%d offset:%d' % (V_VZ, V_SCA, L_SC + 6144))
            a('ds_read_u16 v%d, v%d offset:%d' % (V_KZN, V_SCA, L_SC + 512))
            a('v_add_u32 v%d, 0x200, v%d' % (V_SCA, V_SCA))
        for i in range(16):
            K = slot(i)
            cur, prev = V_W[i & 1], V_W[(i + 1) & 1]
            dpp('v_mov_b32_dpp', V_B, V_KZ, None, 'row_newbcast:%d' % i)
            if i >= 8: dpp('v_add_f32_dpp', V_S + i - 8, V_S + i - 8, V_S + i - 8, 'row_mirror', 0x3)
            a('s_waitcnt vmcnt(%d)' % younger(i))
            events(i)
            if i == 0 and stamps:
                a('s_cmp_lg_u32 s%d, 0' % S_IT)
                a('s_cbranch_scc1 L_nost1' + tag)
                stamp(1)
                a.label('L_nost1' + tag)
            for j in range(4): a('v_cvt_f32_i32 v%d, v%d' % (K + j, K + j))
            for j in range(4): a('v_sub_f32 v%d, v%d, v%d' % (K + j, K + j, V_B))
            D = V_S + i if i < 8 else V_TT
            a('v_mul_f32 v%d, v%d, v%d' % (D, K, cur))
            for j in range(1, 4): a('v_fmac_f32 v%d, v%d, v%d' % (D, K + j, cur + j))
            for j in range(4): a('v_fma_f32 v%d, v%d, v%d, -v%d' % (prev + j, V_C2 + j, cur + j, prev + j))
            if i >= 8: dpp('v_add_f32_dpp', V_S + i - 8, V_TT, V_TT, 'row_mirror', 0xc)
        a('s_nop 1')
        for i in range(4): dpp('v_add_f32_dpp', V_S + i, V_S + i, V_S + i, 'row_half_mirror', 0x5)
        for i in range(4): dpp('v_add_f32_dpp', V_S + i, V_S + 4 + i, V_S + 4 + i, 'row_half_mirror', 0xa)
        for i in range(4): dpp('v_add_f32_dpp', V_S + 4 + i, V_S + i, V_S + i, 'quad_perm:[2,3,0,1]')
        a('v_cndmask_b32 v%d, v%d, v%d, s[%d:%d]' % (V_S, V_S + 4, V_S + 6, S_M1, S_M1 + 1))
        a('v_cndmask_b32 v%d, v%d, v%d, s[%d:%d]' % (V_S + 1, V_S + 5, V_S + 7, S_M1, S_M1 + 1))
        a('s_waitcnt lgkmcnt(0)')
        a('v_lshlrev_b32 v%d, 16, v%d' % (V_KS, V_KS))
        dpp('v_add_f32_dpp', V_S + 2, V_S, V_S, 'quad_perm:[1,0,3,2]')
        dpp('v_add_f32_dpp', V_S + 3, V_S + 1, V_S + 1, 'quad_perm:[1,0,3,2]')
        a('v_lshlrev_b32 v%d, 16, v%d' % (V_VS, V_VS))
        a('v_cndmask_b32 v%d, v%d, v%d, s[%d:%d]' % (V_S, V_S + 2, V_S + 3, S_M0, S_M0 + 1))
        LG, X, Y = V_S, V_S + 1, V_S + 2
        a('v_mul_f32 v%d, v%d, v%d' % (LG, LG, V_KS))
        a('v_lshlrev_b32 v%d, 16, v%d' % (V_VZ, V_VZ))
        a('v_mov_b32 v%d, v%d' % (X, LG))
        a('s_nop 1')
        a('v_permlane16_swap_b32 v%d, v%d' % (LG, X))
        a('v_add_f32 v%d, v%d, v%d' % (LG, LG, X))
        a('v_mul_f32 v%d, s%d, v%d' % (LG, S_C, LG))
        a('s_nop 1')
        dpp('v_max_f32_dpp', X, LG, LG, 'row_ror:8')
        for n in (4, 2, 1):
            a('s_nop 1')
            dpp('v_max_f32_dpp', X, X, X, 'row_ror:%d' % n)
        a('v_mov_b32 v%d, v%d' % (Y, X))
        a('s_nop 1')
        a('v_permlane32_swap_b32 v%d, v%d' % (X, Y))
        MN, AL = V_S + 3, V_S + 7
        a('v_max3_f32 v%d, v%d, v%d, v%d' % (MN, X, Y, V_M))
        PP, AA, AZ = V_S + 4, V_S + 5, V_S + 6
        a('v_sub_f32 v%d, v%d, v%d' % (PP, LG, MN))
        a('v_sub_f32 v%d, v%d, v%d' % (AL, V_M, MN))
        a('v_exp_f32 v%d, v%d' % (PP, PP))
        a('v_exp_f32 v%d, v%d' % (AL, AL))
        a('v_mov_b32 v%d, v%d' % (V_M, MN))
        a('v_mul_f32 v%d, v%d, v%d' % (AA, PP, V_VS))
        a('v_mul_f32 v%d, v%d, v%d' % (AZ, AA, V_VZ))
        a('v_fma_f32 v%d, v%d, v%d, v%d' % (V_L, V_L, AL, PP))
        if prel:
            a('v_mov_b32 v%d, v%d' % (V_LR, V_L))
            a('s_nop 0')
            for n in (8, 4, 2, 1):
                dpp('v_add_f32_dpp', AZ, AZ, AZ, 'row_ror:%d' % n)
                dpp('v_add_f32_dpp', V_LR, V_LR, V_LR, 'row_ror:%d' % n)
                a('s_nop 0')
            a('v_mov_b32 v%d, v%d' % (V_LR + 1, V_LR))
            for j in range(4): a('v_fma_f32 v%d, v%d, v%d, -v%d' % (V_O + j, V_O + j, AL, AZ))
            a('v_permlane32_swap_b32 v%d, v%d' % (V_LR, V_LR + 1))
            a('v_add_f32 v%d, v%d, v%d' % (V_LR, V_LR, V_LR + 1))
        else:
            a('s_nop 0')
            for n in (8, 4, 2, 1):
                dpp('v_add_f32_dpp', AZ, AZ, AZ, 'row_ror:%d' % n)
                a('s_nop 1')
            for j in range(4): a('v_fma_f32 v%d, v%d, v%d, -v%d' % (V_O + j, V_O + j, AL, AZ))
        if stamps:
            a('s_cmp_lg_u32 s%d, 0' % S_IT)
            a('s_cbranch_scc1 L_nost2' + tag)
            stamp(2)
            a.label('L_nost2' + tag)
        for i in range(16):
            R = slot(16 + i)
            dpp('v_mov_b32_dpp', V_B, AA, None, 'row_newbcast:%d' % i)
            a('s_waitcnt vmcnt(%d)' % younger(16 + i))
            events(16 + i)
            for j in range(4): a('v_cvt_f32_i32 v%d, v%d' % (R + j, R + j))
            for j in range(4): a('v_fmac_f32 v%d, v%d, v%d' % (V_O + j, V_B, R + j))
        a('s_mov_b32 s%d, s%d' % (S_CUR, S_NXT))
        a('s_add_u32 s%d, s%d, 1' % (S_IT, S_IT))
        a('s_cmp_lt_u32 s%d, %d' % (S_IT, nch))
        a('s_cbranch_scc1 L_chunk' + tag)
    if parity and le != lo:
        a.comment('workgroups on odd XCDs keep more loads in flight (they are served more slowly when the memory system is saturated)')
        a('s_getreg_b32 s%d, hwreg(HW_REG_XCC_ID, 0, 1)' % S_TMP)
        a('s_cmp_eq_u32 s%d, 1' % S_TMP)
        a('s_cbranch_scc1 L_odd')
        loop('e', le)
        a('s_branch L_done')
        a.label('L_odd')
        loop('o', lo)
        a.label('L_done')
    else:
        loop('e', le)
    stamp(3)
    E = V_T + 3
    if prel:
        a('v_mov_b32 v%d, v%d' % (E + 3, V_M))
        a('v_mov_b32 v%d, v%d' % (E + 2, V_LR))
        a('v_permlane32_swap_b32 v%d, v%d' % (V_O, V_O + 2))
        a('v_permlane32_swap_b32 v%d, v%d' % (V_O + 1, V_O + 3))
        a('s_lshl_b32 s%d, s%d, 10' % (S_TMP, S_WAVE))
        a('v_add_u32 v%d, s%d, v%d' % (V_T, S_TMP, V_O16))
        a('v_add_f32 v%d, v%d, v%d' % (E, V_O, V_O + 2))
        a('v_add_f32 v%d, v%d, v%d' % (E + 1, V_O + 1, V_O + 3))
    else:
        a('v_mov_b32 v%d, v%d' % (E + 3, V_M))
        for n in (8, 4, 2, 1):
            dpp('v_add_f32_dpp', V_L, V_L, V_L, 'row_ror:%d' % n)
            if n == 8: a('v_permlane32_swap_b32 v%d, v%d' % (V_O, V_O + 2))
            elif n == 4: a('v_permlane32_swap_b32 v%d, v%d' % (V_O + 1, V_O + 3))
            elif n == 2: a('v_add_f32 v%d, v%d, v%d' % (E, V_O, V_O + 2))
            else: a('v_add_f32 v%d, v%d, v%d' % (E + 1, V_O + 1, V_O + 3))
            a('s_nop 0')
        a('v_mov_b32 v%d, v%d' % (E + 2, V_L))
        a('s_lshl_b32 s%d, s%d, 10' % (S_TMP, S_WAVE))
        a('v_add_u32 v%d, s%d, v%d' % (V_T, S_TMP, V_O16))
        a('v_permlane32_swap_b32 v%d, v%d' % (V_L, E + 2))
        a('v_add_f32 v%d, v%d, v%d' % (E + 2, E + 2, V_L))
    a('ds_write_b128 v%d, %s offset:%d' % (V_T, v(E, 4), L_REC))
    a('s_waitcnt lgkmcnt(0)')
    a('s_cmp_lg_u32 s%d, 0' % S_WAVE)
    a('s_cbranch_scc1 L_others')
    V_C1K, V_O8, V_OUT = V_T, V_T + 1, V_T + 2
    a('v_and_b32 v%d, 15, v0' % V_C1K)
    a('v_lshlrev_b32 v%d, %d, v%d' % (V_C1K, 7 if numa else 10, V_C1K))
    if numa:
        S_RB, S_RE, S_RL = 96, 97, 98
        a('s_lshl_b32 s%d, s%d, 15' % (S_RB, S_HEAD))
        a('s_lshr_b32 s%d, s%d, 3' % (S_TMP, S_HEAD))
        a('s_xor_b32 s%d, s%d, %d' % (S_TMP, S_TMP, numa - 1))
        a('s_lshl_b32 s%d, s%d, 13' % (S_TMP, S_TMP))
        a('s_add_u32 s%d, s%d, s%d' % (S_RB, S_RB, S_TMP))
        a('s_and_b32 s%d, s%d, 15' % (S_TMP, S_REG))
        a('s_lshl_b32 s%d, s%d, 9' % (S_RE, S_TMP))
        a('s_add_u32 s%d, s%d, s%d' % (S_RE, S_RE, S_RB))
        a('s_lshl_b32 s%d, s%d, 7' % (S_RL, S_TMP))
        a('s_add_u32 s%d, s%d, s%d' % (S_RL, S_RL, S_RB))
        a('s_add_u32 s%d, s%d, 16384' % (S_RL, S_RL))
    a('v_lshlrev_b32 v%d, 3, v0' % V_O8)
    a('v_and_b32 v%d, 31, v0' % V_OUT)
    a('v_lshlrev_b32 v%d, 3, v%d' % (V_OUT, V_OUT))
    a('v_lshrrev_b32 v%d, 5, v0' % V_B)
    a('v_lshl_add_u32 v%d, v%d, 2, v%d' % (V_OUT, V_B, V_OUT))
    a('s_barrier')
    stamp(4)
    if stamps: a('s_waitcnt lgkmcnt(0)')
    Q = lambda w: V_X + 4 * w
    for w in range(4): a('ds_read_b128 %s, v%d offset:%d' % (v(Q(w), 4), V_O16, L_REC + 1024 * w))
    a('s_waitcnt lgkmcnt(1)')
    a('v_max3_f32 v%d, v%d, v%d, v%d' % (E + 3, Q(0) + 3, Q(1) + 3, Q(2) + 3))
    a('s_waitcnt lgkmcnt(0)')
    a('v_max_f32 v%d, v%d, v%d' % (E + 3, E + 3, Q(3) + 3))
    for w in range(4): a('v_sub_f32 v%d, v%d, v%d' % (Q(w) + 3, Q(w) + 3, E + 3))
    for w in range(4): a('v_exp_f32 v%d, v%d' % (Q(w) + 3, Q(w) + 3))
    a('s_nop 0')
    for j in range(3): a('v_mul_f32 v%d, v%d, v%d' % (E + j, Q(0) + j, Q(0) + 3))
    for w in range(1, 4):
        for j in range(3): a('v_fmac_f32 v%d, v%d, v%d' % (E + j, Q(w) + j, Q(w) + 3))
    stamp(5)
    if numa:
        a('buffer_store_dwordx2 %s, v%d, %s, s%d offen sc1' % (v(E, 2), V_O8, srd('ws'), S_RE))
        a('s_mov_b64 exec, 0xffff')
        a('buffer_store_dwordx2 %s, v%d, %s, s%d offen sc1' % (v(E + 2, 2), V_O8, srd('ws'), S_RL))
    else:
        a('s_lshl_b32 s%d, s%d, 10' % (S_TMP, S_REG))
        a('buffer_store_dwordx2 %s, v%d, %s, s%d offen sc1' % (v(E, 2), V_O8, srd('ws'), S_TMP))
        a('s_mov_b64 exec, 0xffff')
        a('buffer_store_dwordx2 %s, v%d, %s, s%d offen offset:512 sc1' % (v(E + 2, 2), V_O8, srd('ws'), S_TMP))
    a('s_mov_b64 exec, 1')
    a('s_waitcnt vmcnt(0)')
    stamp(6)
    a('v_mov_b32 v%d, 1' % V_B)
    a('s_lshl_b32 s%d, s%d, 4' % (S_TMP, S_HEAD))
    a('buffer_atomic_add v%d, off, %s, s%d sc0 sc1' % (V_B, srd('dbg'), S_TMP))
    a('s_mov_b64 exec, -1')
    a('s_lshl_b32 s%d, s%d, 14' % (S_REG, S_HEAD))
    a('s_waitcnt vmcnt(0)')
    a('v_readfirstlane_b32 s%d, v%d' % (S_TMP2, V_B))
    stamp(7)
    a('s_nop 3')
    a('s_cmp_lg_u32 s%d, 15' % S_TMP2)
    a('s_cbranch_scc1 L_notlast' if stamps else 's_cbranch_scc1 L_end')
    LM = V_S
    R = lambda i: V_SLOT + 2 * i
    if numa:
        a('s_add_u32 s%d, s%d, 16384' % (S_TMP, S_RB))
        a('buffer_load_dwordx2 %s, v%d, %s, s%d offen sc1' % (v(LM, 2), V_C1K, srd('ws'), S_TMP))
        a('s_add_u32 s%d, s%d, 4096' % (S_TMP, S_RB))
        for i in range(16):
            a('buffer_load_dwordx2 %s, v%d, %s, s%d offen offset:%d sc1' % (v(R(i), 2), V_O8, srd('ws'), S_RB if i < 8 else S_TMP, (i % 8) * 512))
    else:
        a('buffer_load_dwordx2 %s, v%d, %s, s%d offen offset:512 sc1' % (v(LM, 2), V_C1K, srd('ws'), S_REG))
        for i in range(16):
            if i % 4 == 0: a('s_add_u32 s%d, s%d, %d' % (S_TMP, S_REG, (i // 4) * 4096))
            a('buffer_load_dwordx2 %s, v%d, %s, s%d offen offset:%d sc1' % (v(R(i), 2), V_O8, srd('ws'), S_TMP, (i % 4) * 1024))
    a('s_waitcnt vmcnt(16)')
    stamp(8)
    F, M_ = V_S + 2, E + 3
    dpp('v_max_f32_dpp', M_, LM + 1, LM + 1, 'row_ror:8')
    for n in (4, 2, 1):
        a('s_nop 1')
        dpp('v_max_f32_dpp', M_, M_, M_, 'row_ror:%d' % n)
    a('v_sub_f32 v%d, v%d, v%d' % (F, LM + 1, M_))
    a('v_exp_f32 v%d, v%d' % (F, F))
    a('s_nop 0')
    a('v_mul_f32 v%d, v%d, v%d' % (E + 2, LM, F))
    a('v_mov_b32 v%d, 0' % E)
    a('v_mov_b32 v%d, 0' % (E + 1))
    for i in range(16):
        a('s_waitcnt vmcnt(%d)' % (15 - i))
        dpp('v_fmac_f32_dpp', E, F, R(i), 'row_newbcast:%d' % i)
        dpp('v_fmac_f32_dpp', E + 1, F, R(i) + 1, 'row_newbcast:%d' % i)
        if i in (0, 2, 4, 6): dpp('v_add_f32_dpp', E + 2, E + 2, E + 2, 'row_ror:%d' % (8 >> (i // 2)))
    stamp(9)
    a('v_rcp_f32 v%d, v%d' % (E + 2, E + 2))
    a('s_nop 0')
    a('v_mul_f32 v%d, v%d, v%d' % (E, E, E + 2))
    a('v_mul_f32 v%d, v%d, v%d' % (E + 1, E + 1, E + 2))
    a('v_cvt_pk_bf16_f32 v%d, v%d, v%d' % (E, E, E + 1))
    a('buffer_store_dword v%d, v%d, %s, s%d offen' % (E, V_OUT, srd('out'), S_QOFF))
    if stamps:
        a('s_waitcnt vmcnt(0)')
        stamp(10)
        flush_stamps(10)
        a('s_endpgm')
        a.label('L_notlast')
        flush_stamps(7)
    a('s_endpgm')
    a.label('L_others')
    a('s_barrier')
    a.label('L_end')
    a('s_endpgm')
    rh, rl, c2, sd = rope_tables(8)
    a.lines.append('.p2align 6')
    a.lines.append('.type rope_consts,@object')
    a.lines.append('rope_consts:')
    for tab in (rh, rl, c2, sd):
        for b in range(0, 64, 8):
            a.lines.append('    .long ' + ', '.join('0x%08x' % x for x in tab[b:b + 8]))
    a.lines.append('.size rope_consts, 1024')
    launch = '; @launch grid=(256,1,1) block=(256,1,1) lds=%d' % lds
    notes = '''; Single-query attention over a quantised KV cache: 256 workgroups (16 heads x 16 ranges of 512 tokens) x 4 waves.
; * a wave walks 128 tokens in 4 chunks of 32 (two tokens per load, %d loads in flight): dequantise K, dot with the
;   position-rotated query, online softmax (true running maximum), weighted sum of the dequantised V; waves and
;   workgroups are merged with the usual max / rescale rule.
; * RoPE on K is applied on the query side (same bilinear form). k_cos / k_sin are the constant tables
;   cos / sin(t * 10000^(-f/64)); they are regenerated from the 64 inverse frequencies (table rope_consts at the end
;   of this file: revolutions per token split hi + lo, 2 cos(8 f), sin(8 f)) instead of being streamed.
; * cross-workgroup hand-off: record in d_ws with write-through stores, arrival counter per head in d_debug,
;   the workgroup whose add comes last reads the 16 records and writes the output.
; * the LDS size keeps it at one workgroup per CU.
''' % le
    if bigv: return wrap(a.text(), launch, 264, accum=256, notes=notes)
    return wrap(a.text(), launch, NV, notes=notes)

if __name__ == '__main__':
    kw = {}
    for arg in sys.argv[2:]:
        k, val = arg.split('=')
        kw[k] = int(val) if val.lstrip('-').isdigit() else val
    open(sys.argv[1], 'w').write(gen(**kw))
```
